```python
import torch

def _softmax(x, axis=-1):
    return torch.softmax(x, dim=axis)
def _gelu(x):
    return torch.nn.functional.gelu(x, approximate="tanh")
def _silu(x):
    return torch.nn.functional.silu(x)
def _sigmoid(x):
    return torch.sigmoid(x)
def _layernorm(x, axis=-1, eps=1e-5):
    m = x.mean(dim=axis, keepdim=True)
    v = x.var(dim=axis, keepdim=True, unbiased=False)
    return (x - m) / torch.sqrt(v + eps)
def _scatter_add(tgt, idx, src, axis=0):
    return tgt.clone().index_add_(axis, idx, src)
def _segment_sum(src, seg, n):
    out = torch.zeros((n,) + src.shape[1:], dtype=src.dtype)
    return out.index_add_(0, seg, src)
def _pad(x, pw):
    flat = tuple(v for pair in reversed(pw) for v in pair)
    return torch.nn.functional.pad(x, flat)

kernel_name = 'concat_heads__softmax_full_mha__ssm_conv_h3__prompt'

def setup_inputs():

    _w = (lambda a: (lambda t: t.to(torch.bfloat16) if t.is_floating_point() else t)(torch.as_tensor(a)))
    def _A_setup():
        B, S, D = 1, 2048, 640
        return {
            "x": _w((lambda *s: torch.randn(*s, dtype=torch.bfloat16) * 0.2)(B, S, D)),
            "wqkv": _w((lambda *s: torch.randn(*s, dtype=torch.bfloat16) * 0.2)(D, 3 * D)),
            "wo": _w((lambda *s: torch.randn(*s, dtype=torch.bfloat16) * 0.05)(D, D)),
        }
    _A_in = _A_setup()

    def _B_setup():
        B, S, D = 1, 2048, 640
        ks = 4
        return {
            "q": _w((lambda *s: torch.randn(*s, dtype=torch.bfloat16) * 0.05)(B, S, D)),
            "k": _w((lambda *s: torch.randn(*s, dtype=torch.bfloat16) * 0.4)(B, S, D)),
            "v": _w((lambda *s: torch.randn(*s, dtype=torch.bfloat16) * 0.4)(B, S, D)),
            "shift_k": _w((lambda *s: torch.randn(*s, dtype=torch.bfloat16) * 0.4)(D, ks) * 0.5),
            "ssm_k": _w((lambda *s: torch.randn(*s, dtype=torch.bfloat16) * 1.6)(D, S) * (1.0 / S ** 0.5)),
            "ssm_D": _w((lambda *s: torch.randn(*s, dtype=torch.bfloat16) * 0.4)(D)),
        }
    _B_in = _B_setup()

    return {
        "A_x": _A_in["x"],
        "A_wqkv": _A_in["wqkv"],
        "A_wo": _A_in["wo"],
        "B_q": _B_in["q"],
        "B_k": _B_in["k"],
        "B_v": _B_in["v"],
        "B_shift_k": _B_in["shift_k"],
        "B_ssm_k": _B_in["ssm_k"],
        "B_ssm_D": _B_in["ssm_D"],
    }

def reference(A_x, A_wqkv, A_wo, B_q, B_k, B_v, B_shift_k, B_ssm_k, B_ssm_D):
    def _A_ref(x, wqkv, wo):
        B, S, D = x.shape
        H = 32; Dh = D // H
        qkv = (lambda x, *d: x.permute(*d))((x @ wqkv).reshape(B, S, 3, H, Dh), 2, 0, 3, 1, 4)
        q, k, v = qkv[0], qkv[1], qkv[2]
        scale = Dh ** -0.5
        scores = torch.einsum("bhqd,bhkd->bhqk", q, k) * scale
        p = _softmax(scores, axis=-1)
        o = torch.einsum("bhqk,bhkd->bhqd", p, v)
        return (lambda x, *d: x.permute(*d))(o, 0, 2, 1, 3).reshape(B, S, D) @ wo

    def _B_ref(q, k, v, shift_k, ssm_k, ssm_D):
        B, S, D = q.shape
        ks = shift_k.shape[-1]
        k_pad = _pad(k, ((0, 0), (ks - 1, 0), (0, 0)))
        k_shift = torch.zeros_like(k)
        for t in range(ks):
            k_shift = k_shift + k_pad[:, t:t + S, :] * shift_k[:, ks - 1 - t][None, None, :]
        kv = k_shift * v
        L = 2 * S
        kv_pad = _pad(kv, ((0, 0), (0, S), (0, 0)))
        kf_pad = _pad(ssm_k, ((0, 0), (0, S)))
        kv_f = (lambda x, axes=(-2,-1): torch.fft.rfft2(x.float(), dim=axes))(kv_pad[:, None, :, :], axes=(1, 2))
        kf_f = (lambda x, axes=(-2,-1): torch.fft.rfft2(x.float(), dim=axes))(kf_pad[:, None, :], axes=(1, 2))
        kf_f = (lambda x, *d: x.permute(*d))(kf_f, 1, 2, 0)
        y_f = kv_f * kf_f[None, :, :, :]
        y = (lambda x, s, axes=(-2,-1): torch.fft.irfft2(x, s=s, dim=axes).to(torch.bfloat16))(y_f, (1, L), axes=(1, 2))[:, 0, :S, :]
        y = y + kv * ssm_D[None, None, :]
        return q * y

    a = _A_ref(A_x, A_wqkv, A_wo)
    b = _B_ref(B_q, B_k, B_v, B_shift_k, B_ssm_k, B_ssm_D)
    return torch.concatenate([a, b], axis=-1)
```

```python
class Asm:
    def __init__(self):
        self.lines = []
        self.uid = 0
    def __call__(self, s):
        for ln in s.split("\n"):
            ln = ln.strip()
            if ln:
                self.lines.append(("" if ln.endswith(":") else "    ") + ln)
    def label(self, name):
        self.lines.append(name + ":")
    def newlabel(self, base):
        self.uid += 1
        return "L_%s_%d" % (base, self.uid)
    def comment(self, s):
        self.lines.append("    ; " + s)
    def text(self):
        return "\n".join(self.lines) + "\n"

def v(a, n=1):
    return "v%d" % a if n == 1 else "v[%d:%d]" % (a, a + n - 1)
def s(a, n=1):
    return "s%d" % a if n == 1 else "s[%d:%d]" % (a, a + n - 1)

class Regs:
    def __init__(self, start=0, limit=256):
        self.next = start
        self.limit = limit
        self.hi = start
    def alloc(self, n=1, align=1):
        a = (self.next + align - 1) // align * align
        self.next = a + n
        self.hi = max(self.hi, self.next)
        assert self.next <= self.limit, "out of regs"
        return a

KD = """.section .rodata,"a"
.p2align 6
.amdhsa_kernel {name}
  .amdhsa_next_free_vgpr {nv}
  .amdhsa_next_free_sgpr {ns}
  .amdhsa_accum_offset {acc}
  .amdhsa_group_segment_fixed_size 0
  .amdhsa_kernarg_size 96
  .amdhsa_user_sgpr_count 2
  .amdhsa_user_sgpr_kernarg_segment_ptr 1
  .amdhsa_system_sgpr_workgroup_id_x 1
  .amdhsa_float_denorm_mode_32 {dn}
.end_amdhsa_kernel
.text
"""
def kd(name, nv, ns=96, dn=3):
    nv = (nv + 7) // 8 * 8
    return KD.format(name=name, nv=nv, ns=ns, acc=(nv + 3) // 4 * 4, dn=dn)
def entry(name):
    return ".globl %s\n.p2align 8\n.type %s,@function\n%s:\n" % (name, name, name)
```

```python
from asm import *
from layout import *
from common import *

GS = 1024 + 32
HALF = 11 * GS
SLOT = 2 * HALF
NSLOT = 3
XCH = NSLOT * SLOT
PRIV = XCH
PRIVSZ = 3072
ATTN_LDS = XCH + 8 * 3072

def emit_attn(k, R, opts=None):
    opts = opts or {}
    sWS = 4
    sW, sHEAD, sT, sC, sSLOT, sTMP, sTMP2, sKH, sQG = 8, 9, 10, 11, 13, 14, 15, 16, 17
    sMSK = 20; sMSK2 = 22
    sSRC = [24, 25, 26]; sDST = [27, 28, 29]; sDO = 30; sKV0 = 31; sND = 32
    vLane = R.alloc()
    aK1c, aK2c, aVc, aK1n, aK2n, aVn = [R.alloc() for _ in range(6)]
    lK1, lK2, lV, vDMA = [R.alloc() for _ in range(4)]
    vT = [R.alloc() for _ in range(6)]
    Q1 = [R.alloc(4, 4), R.alloc(4, 4)]
    K1 = R.alloc(4, 4)
    Q2 = [R.alloc(2, 2), R.alloc(2, 2)]
    K2 = R.alloc(2, 2)
    V = R.alloc(8, 4)
    P = [R.alloc(8, 4), R.alloc(8, 4)]
    SS = [[R.alloc(16, 4), R.alloc(16, 4)], [R.alloc(16, 4), R.alloc(16, 4)]]
    O = [R.alloc(16, 4), R.alloc(16, 4)]

    stamp(k, opts, 0)
    if opts.get("stamp"): k("s_memrealtime s[60:61]")
    k(f"s_load_dwordx2 {s(sWS,2)}, s[0:1], {KA_WS}")
    k(f"v_and_b32 {v(vLane)}, 63, v0")
    wave_id(k, sW, vT[0])
    k(f"""s_and_b32 {s(sHEAD)}, s2, 7
    s_lshl_b32 {s(sHEAD)}, {s(sHEAD)}, 2
    s_bfe_u32 {s(sTMP)}, s2, 0x20003
    s_add_u32 {s(sHEAD)}, {s(sHEAD)}, {s(sTMP)}
    s_lshr_b32 {s(sT)}, s2, 5
    s_lshl_b32 {s(sT)}, {s(sT)}, 3
    s_and_b32 {s(sQG)}, {s(sW)}, 3
    s_lshr_b32 {s(sKH)}, {s(sW)}, 2
    s_lshl_b32 {s(sTMP)}, {s(sQG)}, 1
    s_add_u32 {s(sT)}, {s(sT)}, {s(sTMP)}
    v_lshlrev_b32 {v(vDMA)}, 4, {v(vLane)}
    v_and_b32 {v(vT[0])}, 31, {v(vLane)}
    v_lshlrev_b32 {v(lK2)}, 3, {v(vT[0])}
    v_lshrrev_b32 {v(vT[1])}, 5, {v(vLane)}""")
    vQ = vT[2]
    k(f"""v_lshlrev_b32 {v(vQ)}, 15, {v(vT[1])}
    v_add_u32 {v(vQ)}, {v(vQ)}, {v(lK2)}
    s_mul_i32 {s(sKV0)}, {s(sHEAD)}, {5*GRP}
    s_lshl_b32 {s(sTMP)}, {s(sT)}, 8
    s_add_u32 {s(sTMP)}, {s(sTMP)}, {s(sKV0)}
    s_add_u32 {s(sTMP2)}, {s(sTMP)}, {GRP}""")
    for i in range(3):
        k(f"""s_add_u32 {s(sDST[i])}, {s(sW)}, {8*i}
        s_cmp_ge_u32 {s(sDST[i])}, 20
        s_cselect_b32 {s(sND)}, 8, 0
        s_sub_u32 {s(sDST[i])}, {s(sDST[i])}, {s(sND)}
        s_cmp_ge_u32 {s(sDST[i])}, 10
        s_cselect_b32 {s(sSRC[i])}, 1, 0
        s_mul_i32 {s(sND)}, {s(sSRC[i])}, 10
        s_sub_u32 {s(sDST[i])}, {s(sDST[i])}, {s(sND)}
        s_mul_i32 {s(sND)}, {s(sSRC[i])}, {HALF}
        s_lshl_b32 {s(sSRC[i])}, {s(sSRC[i])}, 13
        s_add_u32 {s(sSRC[i])}, {s(sSRC[i])}, {s(sKV0)}
        s_add_u32 {s(sSRC[i])}, {s(sSRC[i])}, {WS_K}
        s_cmp_ge_u32 {s(sDST[i])}, 5
        s_cselect_b32 {s(sDO)}, {PART - 5*GRP}, 0
        s_add_u32 {s(sSRC[i])}, {s(sSRC[i])}, {s(sDO)}
        s_lshl_b32 {s(sDO)}, {s(sDST[i])}, 14
        s_add_u32 {s(sSRC[i])}, {s(sSRC[i])}, {s(sDO)}
        s_mul_i32 {s(sDST[i])}, {s(sDST[i])}, {GS}
        s_add_u32 {s(sDST[i])}, {s(sDST[i])}, {s(sND)}""")
    k("s_waitcnt lgkmcnt(0)")
    srd(k, sWS, WS_BYTES)
    for t in range(2):
        k(f"buffer_load_dwordx2 {v(Q1[t],2)}, {v(vQ)}, {s(sWS,4)}, {s(sTMP)} offen offset:{t*256}")
        k(f"buffer_load_dwordx2 {v(Q1[t]+2,2)}, {v(vQ)}, {s(sWS,4)}, {s(sTMP2)} offen offset:{t*256}")
    k(f"s_add_u32 {s(sTMP)}, {s(sTMP)}, {4*GRP}")
    for t in range(2):
        k(f"buffer_load_dwordx2 {v(Q2[t],2)}, {v(lK2)}, {s(sWS,4)}, {s(sTMP)} offen offset:{t*256}")
    def dma_piece(i, slot_const=None):
        lab = None
        if slot_const is None:
            k(f"s_add_u32 m0, {s(sDST[i])}, {s(sSLOT)}")
        else:
            k(f"s_add_u32 m0, {s(sDST[i])}, {slot_const}")
        k("s_nop 0")
        k(f"buffer_load_dwordx4 {v(vDMA)}, {s(sWS,4)}, {s(sSRC[i])} offen lds")
        k(f"s_add_u32 {s(sSRC[i])}, {s(sSRC[i])}, 1024")
        if lab: k.label(lab)
    for i in range(3):
        dma_piece(i, 0)
    for i in range(2):
        dma_piece(i, SLOT)
    k(f"""s_cmp_ge_u32 {s(sW)}, 6
    s_cbranch_scc1 L_attn_noones
    s_mul_i32 {s(sTMP)}, {s(sW)}, {HALF}
    s_add_u32 {s(sTMP)}, {s(sTMP)}, {10*GS}
    v_add_u32 {v(vT[0])}, {s(sTMP)}, {v(vDMA)}
    v_mov_b32 {v(V)}, 0x3f80
    v_mov_b32 {v(V+1)}, 0
    v_mov_b32 {v(V+2)}, 0x3f80
    v_mov_b32 {v(V+3)}, 0
    ds_write_b128 {v(vT[0])}, {v(V,4)}""")
    k.label("L_attn_noones")
    k(f"""s_mul_i32 {s(sTMP)}, {s(sKH)}, {HALF}
    v_mul_u32_u24 {v(lK1)}, {2*GS}, {v(vT[1])}
    v_add_u32 {v(lK1)}, {v(lK1)}, {v(lK2)}
    v_add_u32 {v(lK1)}, {s(sTMP)}, {v(lK1)}
    v_add_u32 {v(lK2)}, {4*GS}, {v(lK2)}
    v_add_u32 {v(lK2)}, {s(sTMP)}, {v(lK2)}
    v_lshlrev_b32 {v(vT[0])}, 2, {v(vT[1])}
    v_bfe_u32 {v(vT[3])}, {v(vLane)}, 2, 2
    v_add_u32 {v(vT[0])}, {v(vT[0])}, {v(vT[3])}
    v_lshlrev_b32 {v(lV)}, 3, {v(vT[0])}
    v_and_b32 {v(vT[0])}, 3, {v(vLane)}
    v_and_b32 {v(vT[3])}, 1, {v(vLane)}
    v_add_u32 {v(vT[3])}, 4, {v(vT[3])}
    v_bfe_u32 {v(vT[4])}, {v(vLane)}, 4, 1
    v_cmp_eq_u32 vcc, 1, {v(vT[4])}
    s_add_u32 {s(sTMP)}, {s(sTMP)}, {5*GS}
    s_nop 0
    v_cndmask_b32 {v(vT[0])}, {v(vT[0])}, {v(vT[3])}, vcc
    v_mul_u32_u24 {v(vT[0])}, {GS}, {v(vT[0])}
    v_add_u32 {v(lV)}, {v(lV)}, {v(vT[0])}
    v_add_u32 {v(lV)}, {s(sTMP)}, {v(lV)}
    v_mov_b32 {v(aK1c)}, {v(lK1)}
    v_mov_b32 {v(aK2c)}, {v(lK2)}
    v_mov_b32 {v(aVc)}, {v(lV)}
    v_add_u32 {v(aK1n)}, {SLOT}, {v(lK1)}
    v_add_u32 {v(aK2n)}, {SLOT}, {v(lK2)}
    v_add_u32 {v(aVn)}, {SLOT}, {v(lV)}
    s_mov_b32 {s(sSLOT)}, {2*SLOT}
    s_mov_b32 {s(sND)}, {SLOT}
    s_mov_b32 {s(sC)}, 0""")
    for t in range(2):
        for i in range(16):
            k(f"v_mov_b32 {v(O[t]+i)}, 0")
    k(f"v_mov_b32 {v(SS[1][1]+14)}, 0")
    k(f"v_mov_b32 {v(SS[1][1]+15)}, 0")
    for i in range(4):
        k(f"v_mov_b32 {v(P[1]+4+i)}, 0")
        k(f"v_mov_b32 {v(V+4+i)}, 0")
    k("s_waitcnt vmcnt(2) lgkmcnt(0)")
    k(f"v_cmp_gt_u32 vcc, 32, {v(vLane)}")
    k("s_nop 1")
    for t in range(2):
        k(f"v_cndmask_b32 {v(Q2[t])}, 0, {v(Q2[t])}, vcc")
        k(f"v_cndmask_b32 {v(Q2[t]+1)}, 0, {v(Q2[t]+1)}, vcc")
    k("s_barrier")
    stamp(k, opts, 1)
    if opts.get("stamp"): k("s_waitcnt lgkmcnt(0)")
    def qk1(dst, t, cop="0"):
        k(f"v_mfma_f32_32x32x16_bf16 {v(dst,16)}, {v(K1,4)}, {v(Q1[t],4)}, {cop}")
    def qk2(dst, t):
        k(f"v_mfma_f32_32x32x8_bf16 {v(dst,16)}, {v(K2,2)}, {v(Q2[t],2)}, {v(dst,16)}")
    def pv(t, half):
        k(f"v_mfma_f32_32x32x16_bf16 {v(O[t],16)}, {v(V+4*half,4)}, {v(P[t]+4*half,4)}, {v(O[t],16)}")
    inloop = [False]
    def rdK1(tile, nxt):
        if inloop[0] and opts.get("nolds"): return
        a = aK1n if nxt else aK1c
        k(f"ds_read_b64 {v(K1,2)}, {v(a)} offset:{tile*256}")
        k(f"ds_read_b64 {v(K1+2,2)}, {v(a)} offset:{tile*256 + GS}")
    def rdK2(tile, nxt):
        if inloop[0] and opts.get("nolds"): return
        k(f"ds_read_b64 {v(K2,2)}, {v(aK2n if nxt else aK2c)} offset:{tile*256}")
    def rdV(tile, nxt, half):
        if inloop[0] and opts.get("nolds"): return
        a = aVn if nxt else aVc
        for q in (2*half, 2*half+1):
            k(f"ds_read_b64_tr_b16 {v(V+2*q,2)}, {v(a)} offset:{tile*256 + q*64}")
    rdK1(0, False); rdK2(0, False)
    k("s_waitcnt lgkmcnt(0)")
    for t in range(2):
        qk1(SS[0][t], t); qk2(SS[0][t], t)
    rdK1(1, False); rdK2(1, False); rdV(0, False, 0)
    k("s_waitcnt lgkmcnt(0)")
    k("s_nop 7")
    def setprioA(p):
        lab = k.newlabel("pa")
        k(f"s_cmp_lt_u32 {s(sW)}, 4")
        k(f"s_cbranch_scc0 {lab}")
        k(f"s_setprio {p}")
        k.label(lab)
    bal = opts.get("bal")
    if bal is not None:
        lab = k.newlabel("pb")
        k(f"s_setprio 2")
        k(f"s_cmp_lt_u32 {s(sW)}, 4")
        k(f"s_cbranch_scc1 {lab}")
        k(f"s_setprio 1")
        k.label(lab)
    k(".p2align 6")
    k.label("L_attn_chunk")
    inloop[0] = True
    for i in range(4):
        cur = SS[i & 1]; nxt = SS[(i + 1) & 1]; prv = nxt
        def e(t, r): k(f"v_exp_f32 {v(cur[t]+r)}, {v(cur[t]+r)}")
        def c(t, p, buf=None):
            b = (buf or cur)[t]
            k(f"v_cvt_pk_bf16_f32 {v(P[t]+p)}, {v(b+2*p)}, {v(b+2*p+1)}")
        t1 = i + 1; t2 = i + 2
        if bal is not None and i == bal // 8:
            pass
        k("s_waitcnt lgkmcnt(3)")
        qk1(nxt[0], 0)
        e(0,0)
        c(1, 7, prv)
        e(0,1); e(0,2); c(0,0); e(0,3)
        pv(1, 1)
        rdV(i, False, 1)
        e(0,4); c(0,1); e(0,5); e(0,6); c(0,2); e(0,7)
        qk1(nxt[1], 1)
        if i == 2:
            if not opts.get("nobar"):
                k("s_waitcnt vmcnt(0)")
                k("s_barrier")
            if bal is not None: setprioA(2)
        rdK1(t2 % 4, t2 >= 4)
        dm = {2: 0, 3: 1, 0: 2}
        if i in dm and not opts.get("nodma"):
            if i == 0:
                k(f"s_add_u32 m0, {s(sDST[2])}, {s(sND)}")
                k("s_nop 0")
                k(f"buffer_load_dwordx4 {v(vDMA)}, {s(sWS,4)}, {s(sSRC[2])} offen lds")
                k(f"s_add_u32 {s(sSRC[2])}, {s(sSRC[2])}, 1024")
            else:
                dma_piece(dm[i])
        e(0,8); c(0,3); e(0,9); e(0,10); c(0,4); e(0,11)
        k("s_waitcnt lgkmcnt(4)")
        pv(0, 0)
        e(0,12); c(0,5); e(0,13); e(0,14); c(0,6); e(0,15)
        qk2(nxt[0], 0)
        if bal is not None and i == bal: setprioA(0)
        e(1,0); c(0,7); e(1,1); e(1,2); c(1,0); e(1,3)
        k("s_waitcnt lgkmcnt(2)")
        pv(0, 1)
        e(1,4); c(1,1); e(1,5); e(1,6); c(1,2); e(1,7)
        qk2(nxt[1], 1)
        rdK2(t2 % 4, t2 >= 4)
        e(1,8); c(1,3); e(1,9); e(1,10); c(1,4); e(1,11)
        pv(1, 0)
        rdV(t1 % 4, t1 >= 4, 0)
        e(1,12); c(1,5); e(1,13); e(1,14); c(1,6); e(1,15)
    inloop[0] = False
    k(f"""v_mov_b32 {v(aK1c)}, {v(aK1n)}
    v_mov_b32 {v(aK2c)}, {v(aK2n)}
    v_mov_b32 {v(aVc)}, {v(aVn)}
    v_add_u32 {v(aK1n)}, {s(sSLOT)}, {v(lK1)}
    v_add_u32 {v(aK2n)}, {s(sSLOT)}, {v(lK2)}
    v_add_u32 {v(aVn)}, {s(sSLOT)}, {v(lV)}
    s_mov_b32 {s(sND)}, {s(sSLOT)}
    s_add_u32 {s(sSLOT)}, {s(sSLOT)}, {SLOT}
    s_cmp_eq_u32 {s(sSLOT)}, {3*SLOT}
    s_cselect_b32 {s(sSLOT)}, 0, {s(sSLOT)}
    s_add_u32 {s(sC)}, {s(sC)}, 1
    s_cmp_lt_u32 {s(sC)}, 8
    s_cbranch_scc1 L_attn_chunk""")
    last = SS[1]
    k(f"v_cvt_pk_bf16_f32 {v(P[1]+7)}, {v(last[1]+14)}, {v(last[1]+15)}")
    k("s_waitcnt lgkmcnt(0)")
    k("s_nop 1")
    pv(1, 1)
    stamp(k, opts, 2)
    if bal is not None: k("s_setprio 0")
    vA = vT[2]; vL = vT[0]; vX = vT[1]
    OK_ = SS[0][0]
    k(f"""s_mul_i32 {s(sTMP)}, {s(sW)}, 3072
    s_add_u32 {s(sTMP)}, {s(sTMP)}, {XCH}
    v_add_u32 {v(vA)}, {s(sTMP)}, {v(vDMA)}
    s_nop 15
    s_cmp_ge_u32 {s(sW)}, 4
    s_cbranch_scc1 L_attn_xb""")
    for q in range(3):
        k(f"ds_write_b128 {v(vA)}, {v(O[1]+4*q,4)} offset:{q*1024}")
    for i in range(12):
        k(f"v_mov_b32 {v(OK_+i)}, {v(O[0]+i)}")
    k("s_branch L_attn_xc")
    k.label("L_attn_xb")
    for q in range(3):
        k(f"ds_write_b128 {v(vA)}, {v(O[0]+4*q,4)} offset:{q*1024}")
    for i in range(12):
        k(f"v_mov_b32 {v(OK_+i)}, {v(O[1]+i)}")
    for i in range(4):
        k(f"v_mov_b32 {v(Q1[0]+i)}, {v(Q1[1]+i)}")
    for i in range(2):
        k(f"v_mov_b32 {v(Q2[0]+i)}, {v(Q2[1]+i)}")
    k(f"s_add_u32 {s(sT)}, {s(sT)}, 1")
    k.label("L_attn_xc")
    OO = O[0]
    k(f"""s_xor_b32 {s(sTMP)}, {s(sW)}, 4
    s_mul_i32 {s(sTMP)}, {s(sTMP)}, 3072
    s_add_u32 {s(sTMP)}, {s(sTMP)}, {XCH}
    v_add_u32 {v(vX)}, {s(sTMP)}, {v(vDMA)}
    s_waitcnt lgkmcnt(0)
    s_barrier""")
    for q in range(3):
        k(f"ds_read_b128 {v(OO+4*q,4)}, {v(vX)} offset:{q*1024}")
    k("s_waitcnt lgkmcnt(0)")
    for i in range(12):
        k(f"v_add_f32 {v(OO+i)}, {v(OO+i)}, {v(OK_+i)}")
    def get_l():
        k(f"""v_mov_b32 {v(vX)}, {v(OO+8)}
        v_mov_b32 {v(vL)}, {v(OO+8)}
        s_nop 1
        v_permlane32_swap_b32 {v(vX)}, {v(vL)}""")
    get_l()
    k(f"v_mul_f32 {v(vX)}, 0, {v(OO)}")
    for i in range(1, 12):
        k(f"v_fma_f32 {v(vX)}, {v(OO+i)}, 0, {v(vX)}")
    k(f"""s_mov_b32 {s(sTMP)}, {f32bits(2.0**-90):#x}
    s_mov_b32 {s(sTMP2)}, {f32bits(2.0**90):#x}
    v_cmp_le_f32 {s(sMSK,2)}, {s(sTMP)}, {v(vL)}
    v_cmp_ge_f32 {s(sMSK2,2)}, {s(sTMP2)}, {v(vL)}
    v_cmp_o_f32 vcc, {v(vX)}, {v(vX)}
    s_nop 1
    s_and_b64 {s(sMSK,2)}, {s(sMSK,2)}, {s(sMSK2,2)}
    s_and_b64 {s(sMSK,2)}, {s(sMSK,2)}, vcc
    s_cmp_eq_u64 {s(sMSK,2)}, -1
    s_cbranch_scc1 L_attn_fin""")
    C = SS[1][0]; SA = SS[1][1]
    sPB = sSLOT
    k(f"""s_xor_b32 {s(sTMP)}, {s(sW)}, 4
    s_mul_i32 {s(sTMP)}, {s(sTMP)}, 3072
    s_add_u32 {s(sPB)}, {s(sTMP)}, {XCH}""")
    aP1, aP2, aPV, vS = aK1c, aK2c, aVc, aK1n
    k(f"""v_and_b32 {v(vT[3])}, 31, {v(vLane)}
    v_lshlrev_b32 {v(vT[3])}, 3, {v(vT[3])}
    v_lshrrev_b32 {v(vT[4])}, 5, {v(vLane)}
    v_lshl_add_u32 {v(aP1)}, {v(vT[4])}, 9, {v(vT[3])}
    v_add_u32 {v(aP1)}, {s(sPB)}, {v(aP1)}
    v_add_u32 {v(aP2)}, 1024, {v(vT[3])}
    v_add_u32 {v(aP2)}, {s(sPB)}, {v(aP2)}
    v_lshlrev_b32 {v(vT[4])}, 2, {v(vT[4])}
    v_bfe_u32 {v(vT[5])}, {v(vLane)}, 2, 2
    v_add_u32 {v(vT[4])}, {v(vT[4])}, {v(vT[5])}
    v_lshlrev_b32 {v(aPV)}, 3, {v(vT[4])}
    v_and_b32 {v(vT[4])}, 3, {v(vLane)}
    v_and_b32 {v(vT[5])}, 1, {v(vLane)}
    v_add_u32 {v(vT[5])}, 4, {v(vT[5])}
    v_bfe_u32 {v(vX)}, {v(vLane)}, 4, 1
    v_cmp_eq_u32 vcc, 1, {v(vX)}
    s_nop 1
    v_cndmask_b32 {v(vT[4])}, {v(vT[4])}, {v(vT[5])}, vcc
    v_lshl_add_u32 {v(aPV)}, {v(vT[4])}, 8, {v(aPV)}
    v_add_u32 {v(aPV)}, 1280, {v(aPV)}
    v_add_u32 {v(aPV)}, {s(sPB)}, {v(aPV)}
    v_lshrrev_b32 {v(vT[4])}, 4, {v(vLane)}
    v_lshlrev_b32 {v(vT[4])}, 14, {v(vT[4])}
    v_and_b32 {v(vT[5])}, 15, {v(vLane)}
    v_lshl_add_u32 {v(vS)}, {v(vT[5])}, 4, {v(vT[4])}
    v_mov_b32 {v(V)}, 0x3f80
    v_mov_b32 {v(V+1)}, 0
    v_lshlrev_b32 {v(vT[4])}, 3, {v(vLane)}
    v_add_u32 {v(vT[4])}, {s(sPB)}, {v(vT[4])}
    v_cmp_gt_u32 vcc, 32, {v(vLane)}
    s_and_saveexec_b64 {s(sMSK,2)}, vcc
    ds_write_b64 {v(vT[4])}, {v(V,2)} offset:2560
    s_mov_b64 exec, {s(sMSK,2)}""")
    def slow_load():
        k(f"s_add_u32 m0, {s(sPB)}, 0")
        k(f"s_add_u32 {s(sTMP)}, {s(sKV0)}, {s(sND)}")
        k(f"s_add_u32 {s(sTMP)}, {s(sTMP)}, {WS_K}")
        k(f"buffer_load_dwordx4 {v(vS)}, {s(sWS,4)}, {s(sTMP)} offen lds")
        k(f"s_add_u32 m0, {s(sPB)}, 1280")
        k(f"s_add_u32 {s(sTMP2)}, {s(sTMP)}, {PART}")
        k(f"buffer_load_dwordx4 {v(vS)}, {s(sWS,4)}, {s(sTMP2)} offen lds")
        k(f"s_mov_b64 {s(sMSK,2)}, exec")
        k(f"s_mov_b64 exec, 0xffff")
        k(f"s_add_u32 m0, {s(sPB)}, 1024")
        k(f"s_add_u32 {s(sTMP)}, {s(sTMP)}, {4*GRP}")
        k(f"buffer_load_dwordx4 {v(vS)}, {s(sWS,4)}, {s(sTMP)} offen lds")
        k(f"s_add_u32 m0, {s(sPB)}, {1280+1024}")
        k(f"s_add_u32 {s(sTMP2)}, {s(sTMP2)}, {4*GRP}")
        k(f"buffer_load_dwordx4 {v(vS)}, {s(sWS,4)}, {s(sTMP2)} offen lds")
        k(f"s_mov_b64 exec, {s(sMSK,2)}")
        k(f"s_add_u32 {s(sND)}, {s(sND)}, 256")
        k("s_waitcnt vmcnt(0) lgkmcnt(0)")
        k(f"ds_read_b64 {v(K1,2)}, {v(aP1)}")
        k(f"ds_read_b64 {v(K1+2,2)}, {v(aP1)} offset:256")
        k(f"ds_read_b64 {v(K2,2)}, {v(aP2)}")
    vM = vT[3]
    k(f"""v_mov_b32 {v(vM)}, 0xff800000
    s_mov_b32 {s(sND)}, 0
    s_mov_b32 {s(sC)}, 0""")
    k.label("L_attn_maxpass")
    slow_load()
    k("s_waitcnt lgkmcnt(0)")
    qk1(SA, 0); qk2(SA, 0)
    k("s_nop 15")
    for i in range(8):
        k(f"v_max3_f32 {v(vM)}, {v(SA+2*i)}, {v(SA+2*i+1)}, {v(vM)}")
    k(f"""s_add_u32 {s(sC)}, {s(sC)}, 1
    s_cmp_lt_u32 {s(sC)}, 64
    s_cbranch_scc1 L_attn_maxpass
    v_mov_b32 {v(vX)}, {v(vM)}
    s_nop 1
    v_permlane32_swap_b32 {v(vX)}, {v(vM)}
    s_nop 1
    v_max_f32 {v(vM)}, {v(vM)}, {v(vX)}
    s_mov_b32 {s(sND)}, 0
    s_mov_b32 {s(sC)}, 0""")
    for i in range(16):
        k(f"v_sub_f32 {v(C+i)}, 0, {v(vM)}")
        k(f"v_mov_b32 {v(OO+i)}, 0")
    k.label("L_attn_slow2")
    slow_load()
    for q in range(4):
        k(f"ds_read_b64_tr_b16 {v(V+2*q,2)}, {v(aPV)} offset:{q*64}")
    k("s_waitcnt lgkmcnt(0)")
    qk1(SA, 0, v(C, 16)); qk2(SA, 0)
    k("s_nop 15")
    for i in range(16):
        k(f"v_exp_f32 {v(SA+i)}, {v(SA+i)}")
    k("s_nop 0")
    for p in range(8):
        k(f"v_cvt_pk_bf16_f32 {v(P[0]+p)}, {v(SA+2*p)}, {v(SA+2*p+1)}")
    k("s_nop 1")
    k(f"v_mfma_f32_32x32x16_bf16 {v(OO,16)}, {v(V,4)}, {v(P[0],4)}, {v(OO,16)}")
    k(f"v_mfma_f32_32x32x16_bf16 {v(OO,16)}, {v(V+4,4)}, {v(P[0]+4,4)}, {v(OO,16)}")
    k(f"""s_add_u32 {s(sC)}, {s(sC)}, 1
    s_cmp_lt_u32 {s(sC)}, 64
    s_cbranch_scc1 L_attn_slow2
    s_nop 15""")
    get_l()
    k.label("L_attn_fin")
    k(f"v_rcp_f32 {v(vL)}, {v(vL)}")
    vA, vB, vC2 = vT[2], vT[3], vT[4]
    PP = P[0]
    k(f"""v_and_b32 {v(vA)}, 15, {v(vLane)}
    v_lshlrev_b32 {v(vA)}, 4, {v(vA)}
    v_bfe_u32 {v(vB)}, {v(vLane)}, 4, 1
    v_mul_u32_u24 {v(vB)}, 20480, {v(vB)}
    v_add_u32 {v(vA)}, {v(vA)}, {v(vB)}
    s_mul_i32 {s(sTMP)}, {s(sT)}, {2*20480}
    s_add_u32 {s(sTMP)}, {s(sTMP)}, {WS_O}
    s_mul_i32 {s(sTMP2)}, {s(sHEAD)}, 5
    v_lshrrev_b32 {v(vB)}, 5, {v(vLane)}
    v_add_u32 {v(vB)}, {s(sTMP2)}, {v(vB)}""")
    for i in range(12):
        k(f"v_mul_f32 {v(OO+i)}, {v(OO+i)}, {v(vL)}")
    for i in range(3):
        k(f"""v_add_u32 {v(vC2)}, {2*i}, {v(vB)}
        v_lshrrev_b32 {v(vT[5])}, 3, {v(vC2)}
        v_lshlrev_b32 {v(vT[5])}, 10, {v(vT[5])}
        v_and_b32 {v(vX)}, 3, {v(vC2)}
        v_lshl_add_u32 {v(vT[5])}, {v(vX)}, 8, {v(vT[5])}
        v_bfe_u32 {v(vX)}, {v(vC2)}, 2, 1
        v_lshl_add_u32 {v(vT[5])}, {v(vX)}, 3, {v(vT[5])}
        v_add_u32 {v(vT[5])}, {v(vT[5])}, {v(vA)}
        v_cvt_pk_bf16_f32 {v(PP+2*i)}, {v(OO+4*i)}, {v(OO+4*i+1)}
        v_cvt_pk_bf16_f32 {v(PP+2*i+1)}, {v(OO+4*i+2)}, {v(OO+4*i+3)}""")
        if i == 2:
            k(f"""v_cmp_gt_u32 vcc, 32, {v(vLane)}
            v_mov_b32 {v(vX)}, 0x7fffffff
            s_nop 0
            v_cndmask_b32 {v(vT[5])}, {v(vX)}, {v(vT[5])}, vcc""")
        k(f"buffer_store_dwordx2 {v(PP+2*i,2)}, {v(vT[5])}, {s(sWS,4)}, {s(sTMP)} offen")
    if opts.get("stamp"):
        k("s_waitcnt vmcnt(0)")
        stamp(k, opts, 3)
        k("s_memrealtime s[48:49]")
        k("s_waitcnt lgkmcnt(0)")
        k("s_mov_b32 s50, s60")
        k("s_mov_b32 s52, s61")
        stamp_flush(k, opts, 7, sWS, sW, vT[0], vT[1])
    return ATTN_LDS
```

```python
from asm import *
from layout import *
from common import *
from proj import div10

KIMG = 131072
VIMG = KIMG + 12288
B1_LDS = VIMG + 12288

class B1:
    def __init__(self, k, R, opts):
        self.k, self.R, self.opts = k, R, opts
        self.sK, self.sV, self.sSH = 64, 68, 72
        self.sTB, self.sCB, self.sT, self.sT2, self.sTAU = 76, 77, 78, 79, 80
    def load_ptrs(self):
        k = self.k
        k(f"s_load_dwordx2 {s(self.sK,2)}, s[0:1], {KA_BK}")
        k(f"s_load_dwordx2 {s(self.sV,2)}, s[0:1], {KA_BV}")
        k(f"s_load_dwordx2 {s(self.sSH,2)}, s[0:1], {KA_SHIFT}")
    def setup(self):
        k = self.k
        srd(k, self.sK, S * D * 2); srd(k, self.sV, S * D * 2); srd(k, self.sSH, D * 4 * 2)
        k(f"""s_and_b32 {s(self.sTB)}, s2, 7
        s_lshl_b32 {s(self.sTB)}, {s(self.sTB)}, 2
        s_bfe_u32 {s(self.sT)}, s2, 0x20003
        s_add_u32 {s(self.sTB)}, {s(self.sTB)}, {s(self.sT)}
        s_lshr_b32 {s(self.sCB)}, s2, 5""")
    def task_lane(self, i, env, cg, nl):
        k = self.k; sLW = env['sLW']; vLane = env['vLane']; sT, sT2, sTAU = self.sT, self.sT2, self.sTAU
        k(f"""s_mul_i32 {s(sTAU)}, {s(sLW)}, 3
        s_add_u32 {s(sTAU)}, {s(sTAU)}, {i}
        v_lshrrev_b32 {v(nl)}, 4, {v(vLane)}
        s_cmp_lt_u32 {s(sTAU)}, 10
        s_cbranch_scc0 L_b1t_{i}_{self.tag}""")
        k(f"""s_lshr_b32 {s(sT)}, {s(sTAU)}, 1
        v_mov_b32 {v(cg)}, {s(sT)}
        s_and_b32 {s(sT)}, {s(sTAU)}, 1
        s_lshl_b32 {s(sT)}, {s(sT)}, 2
        v_add_u32 {v(nl)}, {s(sT)}, {v(nl)}
        s_branch L_b1u_{i}_{self.tag}""")
        k.label(f"L_b1t_{i}_{self.tag}")
        k(f"""s_sub_u32 {s(sT)}, {s(sTAU)}, 10
        s_lshl_b32 {s(sT)}, {s(sT)}, 2
        v_add_u32 {v(cg)}, {s(sT)}, {v(nl)}
        v_mov_b32 {v(nl)}, 8""")
        k.label(f"L_b1u_{i}_{self.tag}")
    def early(self, env, tag):
        k = self.k; self.tag = tag + "e"
        vLane = env['vLane']; vT = env['vT']; sLW = env['sLW']
        base = env['b1regs']
        self.TAP = base
        sT, sT2 = self.sT, self.sT2
        k(f"""s_lshl_b32 {s(sT)}, {s(self.sTB)}, 6
        s_sub_u32 {s(sT)}, {s(sT)}, 10
        s_mul_i32 {s(sT)}, {s(sT)}, 1280
        s_mul_i32 {s(sT2)}, {s(self.sCB)}, 160
        s_add_u32 {s(sT)}, {s(sT)}, {s(sT2)}
        s_lshl_b32 {s(sT2)}, {s(sLW)}, 6""")
        for i in range(3):
            k(f"v_add_u32 {v(vT[0])}, {s(sT2)}, {v(vLane)}")
            if i: k(f"v_add_u32 {v(vT[0])}, {256*i}, {v(vT[0])}")
            div10(k, vT[0], vT[1], vT[2], vT[3])
            k(f"""v_mul_u32_u24 {v(vT[1])}, 1280, {v(vT[1])}
            v_lshl_add_u32 {v(vT[1])}, {v(vT[2])}, 4, {v(vT[1])}
            v_add_u32 {v(vT[1])}, {s(sT)}, {v(vT[1])}
            s_lshl_b32 {s(self.sTAU)}, {s(sLW)}, 10
            s_add_u32 m0, {s(self.sTAU)}, {KIMG + i*4096}
            s_nop 0
            buffer_load_dwordx4 {v(vT[1])}, {s(self.sK,4)}, 0 offen lds
            s_add_u32 m0, {s(self.sTAU)}, {VIMG + i*4096}
            s_nop 0
            buffer_load_dwordx4 {v(vT[1])}, {s(self.sV,4)}, 0 offen lds""")
        for i in range(3):
            self.task_lane(i, env, vT[4], vT[5])
            k(f"""v_and_b32 {v(vT[0])}, 15, {v(vLane)}
            v_lshl_add_u32 {v(vT[0])}, {v(vT[4])}, 4, {v(vT[0])}
            s_mul_i32 {s(sT)}, {s(self.sCB)}, 80
            v_add_u32 {v(vT[0])}, {s(sT)}, {v(vT[0])}
            v_lshlrev_b32 {v(vT[0])}, 3, {v(vT[0])}
            buffer_load_dwordx2 {v(self.TAP+2*i,2)}, {v(vT[0])}, {s(self.sSH,4)}, 0 offen""")
        return 9
    def late(self, env, tag):
        k = self.k; self.tag = tag + "l"
        vLane = env['vLane']; vT = env['vT']; sWS = env['sWS']
        base = env['b1regs'] + 6
        base = (base + 3) // 4 * 4
        KQ, VQ = base, base + 6
        base2 = (base + 12 + 3) // 4 * 4
        kk = base2
        vv = kk + 12
        w = vv + 9
        u = w + 4
        o = (u + 9 + 3) // 4 * 4
        aT, aS = o + 8, o + 9
        sT, sT2 = self.sT, self.sT2
        for i in range(3):
            cg, nl = vT[4], vT[5]
            self.task_lane(i, env, cg, nl)
            k(f"""v_bfe_u32 {v(vT[0])}, {v(vLane)}, 2, 2
            v_lshl_add_u32 {v(vT[0])}, {v(nl)}, 3, {v(vT[0])}
            v_mul_u32_u24 {v(aT)}, 160, {v(vT[0])}
            v_min_u32 {v(vT[1])}, 4, {v(cg)}
            v_lshl_add_u32 {v(aT)}, {v(vT[1])}, 5, {v(aT)}
            v_and_b32 {v(vT[0])}, 3, {v(vLane)}
            v_lshl_add_u32 {v(aT)}, {v(vT[0])}, 3, {v(aT)}
            v_add_u32 {v(aT)}, {KIMG}, {v(aT)}""")
            for qd in range(3):
                k(f"ds_read_b64_tr_b16 {v(KQ+2*qd,2)}, {v(aT)} offset:{qd*640}")
                k(f"ds_read_b64_tr_b16 {v(VQ+2*qd,2)}, {v(aT)} offset:{12288 + qd*640}")
            k(f"""v_and_b32 {v(vT[0])}, 15, {v(vLane)}
            v_lshl_add_u32 {v(vT[0])}, {v(cg)}, 4, {v(vT[0])}
            s_mul_i32 {s(sT)}, {s(self.sCB)}, 80
            v_add_u32 {v(vT[0])}, {s(sT)}, {v(vT[0])}
            v_mul_u32_u24 {v(aS)}, {2*URROW}, {v(vT[0])}
            v_lshlrev_b32 {v(vT[1])}, 4, {v(nl)}
            v_sub_u32 {v(aS)}, {v(aS)}, {v(vT[1])}
            s_lshl_b32 {s(sT)}, {s(self.sTB)}, 7
            s_sub_u32 {s(sT)}, {WS_UR + 4096}, {s(sT)}
            v_add_u32 {v(aS)}, {s(sT)}, {v(aS)}
            v_cmp_gt_u32 vcc, 5, {v(cg)}
            v_mov_b32 {v(vT[1])}, 0x7ffffff0""")
            tp = self.TAP + 2*i
            k(f"""v_lshlrev_b32 {v(w)}, 16, {v(tp)}
            v_cndmask_b32 {v(aS)}, {v(vT[1])}, {v(aS)}, vcc
            v_and_b32 {v(w+1)}, 0xffff0000, {v(tp)}
            v_lshlrev_b32 {v(w+2)}, 16, {v(tp+1)}
            v_and_b32 {v(w+3)}, 0xffff0000, {v(tp+1)}
            s_waitcnt lgkmcnt(0)""")
            for d in range(6):
                k(f"v_lshlrev_b32 {v(kk+2*d)}, 16, {v(KQ+d)}")
                k(f"v_and_b32 {v(kk+2*d+1)}, 0xffff0000, {v(KQ+d)}")
            for j in range(3, 12):
                src = VQ + j // 2
                if j & 1: k(f"v_and_b32 {v(vv+j-3)}, 0xffff0000, {v(src)}")
                else: k(f"v_lshlrev_b32 {v(vv+j-3)}, 16, {v(src)}")
            for j in range(3, 12):
                k(f"v_mul_f32 {v(u+j-3)}, {v(w+3)}, {v(kk+j-3)}")
                k(f"v_fmac_f32 {v(u+j-3)}, {v(w+2)}, {v(kk+j-2)}")
                k(f"v_fmac_f32 {v(u+j-3)}, {v(w+1)}, {v(kk+j-1)}")
                k(f"v_fmac_f32 {v(u+j-3)}, {v(w)}, {v(kk+j)}")
                k(f"v_mul_f32 {v(u+j-3)}, {v(u+j-3)}, {v(vv+j-3)}")
            U = lambda j: u + j - 3
            for d in range(4):
                k(f"v_cvt_pk_bf16_f32 {v(o+d)}, {v(U(10-2*d))}, {v(U(9-2*d))}")
            for d in range(4):
                k(f"v_cvt_pk_bf16_f32 {v(o+4+d)}, {v(U(11-2*d))}, {v(U(10-2*d))}")
            k(f"s_mov_b32 {s(sT)}, {URROW}")
            k(f"buffer_store_dwordx4 {v(o,4)}, {v(aS)}, {s(sWS,4)}, 0 offen")
            k(f"buffer_store_dwordx4 {v(o+4,4)}, {v(aS)}, {s(sWS,4)}, {s(sT)} offen")
            k("s_nop 1")
        return aS + 1
```

```python
from asm import *
from layout import *
from common import *
from proj import div10, WIMG

ZI = WIMG
QI = ZI + 10240
B3_LDS = QI + 10240

class B3:
    def __init__(self, k, R, opts):
        self.k, self.R, self.opts = k, R, opts
        self.sQ = 64
        self.sT, self.sT2, self.sN = 68, 69, 70
    def load_ptrs(self):
        self.k(f"s_load_dwordx2 {s(self.sQ,2)}, s[0:1], {KA_BQ}")
    def setup(self):
        srd(self.k, self.sQ, S * D * 2)
    def early(self, env):
        k = self.k; vLane, vT, sLW, sTB, sCB, sWS = (env[x] for x in ("vLane", "vT", "sLW", "sTB", "sCB", "sWS"))
        sT, sT2, sN = self.sT, self.sT2, self.sN
        vZ = vT[6]
        k(f"""v_lshrrev_b32 {v(vZ)}, 3, {v(vLane)}
        v_lshlrev_b32 {v(vZ)}, 12, {v(vZ)}
        v_and_b32 {v(vT[0])}, 7, {v(vLane)}
        v_lshl_add_u32 {v(vZ)}, {v(vT[0])}, 4, {v(vZ)}""")
        for i in range(3):
            k(f"""s_add_u32 {s(sN)}, {s(sLW)}, {4*i}
            s_min_u32 {s(sN)}, {s(sN)}, 9
            s_mul_i32 {s(sT)}, {s(sCB)}, 80
            s_lshl_b32 {s(sT2)}, {s(sN)}, 3
            s_add_u32 {s(sT)}, {s(sT)}, {s(sT2)}
            s_lshl_b32 {s(sT)}, {s(sT)}, 12
            s_lshl_b32 {s(sT2)}, {s(sTB)}, 7
            s_add_u32 {s(sT)}, {s(sT)}, {s(sT2)}
            s_add_u32 {s(sT)}, {s(sT)}, {WS_Z}
            s_lshl_b32 {s(sT2)}, {s(sN)}, 10
            s_add_u32 m0, {s(sT2)}, {ZI}
            s_lshl_b32 {s(sN)}, {s(sN)}, 6
            buffer_load_dwordx4 {v(vZ)}, {s(sWS,4)}, {s(sT)} offen lds
            v_add_u32 {v(vT[0])}, {s(sN)}, {v(vLane)}""")
            div10(k, vT[0], vT[1], vT[2], vT[3])
            k(f"""v_mul_u32_u24 {v(vT[1])}, 1280, {v(vT[1])}
            v_lshl_add_u32 {v(vT[1])}, {v(vT[2])}, 4, {v(vT[1])}
            s_mul_i32 {s(sT)}, {s(sTB)}, {64*1280}
            s_mul_i32 {s(sN)}, {s(sCB)}, 160
            s_add_u32 {s(sT)}, {s(sT)}, {s(sN)}
            s_add_u32 m0, {s(sT2)}, {QI}
            s_nop 0
            buffer_load_dwordx4 {v(vT[1])}, {s(self.sQ,4)}, {s(sT)} offen lds""")
        return 6
    def late(self, env):
        k = self.k; vLane, vT, sLW, sTB, sCB, sOUT = (env[x] for x in ("vLane", "vT", "sLW", "sTB", "sCB", "sOUT"))
        sT, sT2 = self.sT, self.sT2
        base = env['b3regs']
        Z, Q, zf, qf, o = base, base + 4, base + 8, base + 16, base + 24
        aZ, aQ, aO, oc = base + 28, base + 29, base + 30, base + 31
        for i in range(3):
            k(f"""v_lshrrev_b32 {v(oc)}, 4, {v(vLane)}
            v_add_u32 {v(oc)}, {4*i}, {v(oc)}
            v_min_u32 {v(vT[0])}, 9, {v(oc)}
            v_lshlrev_b32 {v(vT[1])}, 3, {v(vT[0])}
            v_bfe_u32 {v(vT[2])}, {v(vLane)}, 2, 2
            v_add_u32 {v(vT[1])}, {v(vT[1])}, {v(vT[2])}
            v_lshlrev_b32 {v(aZ)}, 7, {v(vT[1])}
            v_and_b32 {v(vT[2])}, 3, {v(vLane)}
            v_lshl_add_u32 {v(aZ)}, {v(vT[2])}, 3, {v(aZ)}
            s_lshl_b32 {s(sT)}, {s(sLW)}, 5
            s_add_u32 {s(sT)}, {s(sT)}, {ZI}
            v_add_u32 {v(aZ)}, {s(sT)}, {v(aZ)}
            v_and_b32 {v(vT[1])}, 15, {v(vLane)}
            s_lshl_b32 {s(sT)}, {s(sLW)}, 4
            v_add_u32 {v(vT[1])}, {s(sT)}, {v(vT[1])}
            v_mul_u32_u24 {v(aQ)}, 160, {v(vT[1])}
            v_lshl_add_u32 {v(aQ)}, {v(vT[0])}, 4, {v(aQ)}
            v_add_u32 {v(aQ)}, {QI}, {v(aQ)}""")
            k(f"ds_read_b64_tr_b16 {v(Z,2)}, {v(aZ)}")
            k(f"ds_read_b64_tr_b16 {v(Z+2,2)}, {v(aZ)} offset:512")
            k(f"ds_read_b128 {v(Q,4)}, {v(aQ)}")
            k(f"""s_lshl_b32 {s(sT)}, {s(sTB)}, 6
            v_add_u32 {v(vT[1])}, {s(sT)}, {v(vT[1])}
            v_mul_u32_u24 {v(aO)}, 2560, {v(vT[1])}
            v_lshl_add_u32 {v(aO)}, {v(oc)}, 4, {v(aO)}
            s_mul_i32 {s(sT)}, {s(sCB)}, 160
            s_add_u32 {s(sT)}, {s(sT)}, 1280
            v_cmp_gt_u32 vcc, 10, {v(oc)}
            v_mov_b32 {v(vT[2])}, 0x7ffffff0
            s_waitcnt lgkmcnt(0)
            v_cndmask_b32 {v(aO)}, {v(vT[2])}, {v(aO)}, vcc""")
            for d in range(4):
                k(f"v_lshlrev_b32 {v(zf+2*d)}, 16, {v(Z+d)}")
                k(f"v_and_b32 {v(zf+2*d+1)}, 0xffff0000, {v(Z+d)}")
                k(f"v_lshlrev_b32 {v(qf+2*d)}, 16, {v(Q+d)}")
                k(f"v_and_b32 {v(qf+2*d+1)}, 0xffff0000, {v(Q+d)}")
            for e in range(8):
                k(f"v_mul_f32 {v(zf+e)}, {v(zf+e)}, {v(qf+e)}")
            for d in range(4):
                k(f"v_cvt_pk_bf16_f32 {v(o+d)}, {v(zf+2*d)}, {v(zf+2*d+1)}")
            k(f"buffer_store_dwordx4 {v(o,4)}, {v(aO)}, {s(sOUT,4)}, {s(sT)} offen")
            k("s_nop 1")
```

```python
from asm import *
from layout import *
def stamp(k, opts, idx, sbase=40):
    if not opts.get("stamp"): return
    k(f"s_memtime {s(sbase+2*idx,2)}")
def stamp_flush(k, opts, n, sWS, sW, vt0, vt1, sbase=40):
    if not opts.get("stamp"): return
    k("s_waitcnt lgkmcnt(0)")
    k(f"s_lshl_b32 s38, s2, 3")
    k(f"s_add_u32 s38, s38, {s(sW)}")
    k(f"s_lshl_b32 s38, s38, 6")
    k(f"s_add_u32 s38, s38, {WS_STAMP + opts.get('stamp_off', 0)}")
    k(f"v_mov_b32 {v(vt0)}, 0")
    for i in range(n):
        k(f"v_mov_b32 {v(vt1)}, {s(sbase+2*i)}")
        k(f"buffer_store_dword {v(vt1)}, {v(vt0)}, {s(sWS,4)}, s38 offen offset:{4*i}")
        k("s_nop 1")
def srd(k, sr, nbytes):
    k(f"""s_and_b32 {s(sr+1)}, {s(sr+1)}, 0xffff
    s_mov_b32 {s(sr+2)}, {nbytes}
    s_mov_b32 {s(sr+3)}, 0x20000""")
def wave_id(k, sW, vtmp):
    k(f"""v_lshrrev_b32 {v(vtmp)}, 6, v0
    s_nop 0
    v_readfirstlane_b32 {s(sW)}, {v(vtmp)}""")
```

```python
from asm import *
from layout import *
from common import *

HPAD = 64
HC0 = 0
HC1 = 5248
UC0 = HC1 + HPAD + 5120
UC0 = (UC0 + 255) // 256 * 256
UC1 = UC0 + 5120 + 32
CHSZ = (UC1 + 5120 + 255) // 256 * 256
CONV_LDS = 3 * CHSZ
assert (HC1 - HC0) % 256 == 128 and (UC1 - UC0) % 256 == 32

def emit_conv(k, R, opts=None, end_label="L_conv_end"):
    opts = opts or {}
    sH, sWS, sDD = 4, 8, 12
    sW, sCH, sTMP, sTMP2, sLB, sRHO, sN = 16, 17, 18, 19, 20, 21, 22
    sHP = 24
    sH0, sDV = 26, 27
    vLane = R.alloc()
    vT = [R.alloc() for _ in range(8)]
    stamp(k, opts, 0)
    k(f"s_load_dwordx2 {s(sH,2)}, s[0:1], {KA_SSMK}")
    k(f"s_load_dwordx2 {s(sWS,2)}, s[0:1], {KA_WS}")
    k(f"s_load_dwordx2 {s(sDD,2)}, s[0:1], {KA_SSMD}")
    k(f"v_and_b32 {v(vLane)}, 63, v0")
    wave_id(k, sW, vT[0])
    k(f"""s_cmp_lt_u32 s2, 128
    s_cselect_b32 {s(sN)}, 3, 2
    s_mul_i32 {s(sCH)}, s2, {s(sN)}
    s_cselect_b32 {s(sTMP)}, 0, 128
    s_add_u32 {s(sCH)}, {s(sCH)}, {s(sTMP)}
    s_add_u32 {s(sCH)}, {s(sCH)}, {s(sW)}
    s_cmp_ge_u32 {s(sW)}, {s(sN)}
    s_cbranch_scc1 {end_label}""")
    k("s_waitcnt lgkmcnt(0)")
    k(f"s_mov_b64 {s(sHP,2)}, {s(sH,2)}")
    srd(k, sH, D * S * 2); srd(k, sWS, WS_BYTES)
    k(f"""s_lshl_b32 {s(sTMP)}, {s(sCH)}, 12
    s_load_dword {s(sH0)}, {s(sHP,2)}, {s(sTMP)}
    s_lshr_b32 {s(sTMP2)}, {s(sCH)}, 1
    s_lshl_b32 {s(sTMP2)}, {s(sTMP2)}, 2
    s_load_dword {s(sDV)}, {s(sDD,2)}, {s(sTMP2)}
    s_mul_i32 {s(sLB)}, {s(sW)}, {CHSZ}""")
    vD = R.alloc()
    k(f"v_lshlrev_b32 {v(vD)}, 4, {v(vLane)}")
    for c in range(2):
        for i in range(5):
            k(f"s_add_u32 m0, {s(sLB)}, {(HC0, HC1)[c] + HPAD + i*1024}")
            k(f"s_add_u32 {s(sTMP2)}, {s(sTMP)}, {i*1024 + 4*c}")
            k(f"buffer_load_dwordx4 {v(vD)}, {s(sH,4)}, {s(sTMP2)} offen lds")
    k(f"s_mul_i32 {s(sTMP)}, {s(sCH)}, {2*URROW}")
    k(f"s_add_u32 {s(sTMP)}, {s(sTMP)}, {WS_UR}")
    for c in range(2):
        for i in range(5):
            k(f"s_add_u32 m0, {s(sLB)}, {(UC0, UC1)[c] + i*1024}")
            k(f"s_add_u32 {s(sTMP2)}, {s(sTMP)}, {i*1024 + URROW*c}")
            k(f"buffer_load_dwordx4 {v(vD)}, {s(sWS,4)}, {s(sTMP2)} offen lds")
    aH, aU = R.alloc(), R.alloc()
    k(f"""v_and_b32 {v(vT[0])}, 1, {v(vLane)}
    v_mul_u32_u24 {v(aH)}, {HC1 - HC0}, {v(vT[0])}
    v_bfe_u32 {v(vT[1])}, {v(vLane)}, 1, 3
    v_lshl_add_u32 {v(aH)}, {v(vT[1])}, 3, {v(aH)}
    v_lshrrev_b32 {v(vT[2])}, 4, {v(vLane)}
    v_lshl_add_u32 {v(aH)}, {v(vT[2])}, 4, {v(aH)}
    s_add_u32 {s(sTMP)}, {s(sLB)}, {HC0 + HPAD - 64}
    v_add_u32 {v(aH)}, {s(sTMP)}, {v(aH)}
    v_mul_u32_u24 {v(aU)}, {UC1 - UC0}, {v(vT[0])}
    v_lshl_add_u32 {v(aU)}, {v(vT[2])}, 4, {v(aU)}
    v_lshlrev_b32 {v(vT[1])}, 6, {v(vT[1])}
    v_sub_u32 {v(aU)}, {v(aU)}, {v(vT[1])}
    s_add_u32 {s(sTMP)}, {s(sLB)}, {UC0 + 2048*2 - 7*512 - 64}
    v_add_u32 {v(aU)}, {s(sTMP)}, {v(aU)}""")
    ACC = R.alloc(32, 4)
    HF = [R.alloc(32, 4), R.alloc(32, 4)]
    UF = [R.alloc(32, 4), R.alloc(32, 4)]
    for i in range(32):
        k(f"v_mov_b32 {v(ACC+i)}, 0")
    tz = HF[0]
    for i in range(4):
        k(f"v_mov_b32 {v(tz+i)}, 0")
    k("s_waitcnt lgkmcnt(0)")
    k(f"""s_and_b32 {s(sTMP)}, {s(sCH)}, 1
    s_lshl_b32 {s(sTMP)}, {s(sTMP)}, 4
    s_lshr_b32 {s(sDV)}, {s(sDV)}, {s(sTMP)}
    s_lshl_b32 {s(sDV)}, {s(sDV)}, 16
    s_lshl_b32 {s(sTMP)}, {s(sH0)}, 16
    v_mov_b32 {v(vT[3])}, {s(sTMP)}
    v_add_f32 {v(vT[3])}, {s(sDV)}, {v(vT[3])}
    v_cvt_pk_bf16_f32 {v(vT[3])}, {v(vT[3])}, {v(vT[3])}
    v_and_b32 {v(vT[3])}, 0xffff, {v(vT[3])}
    s_and_b32 {s(sTMP)}, {s(sH0)}, 0xffff0000
    v_or_b32 {v(vT[3])}, {s(sTMP)}, {v(vT[3])}
    v_lshlrev_b32 {v(vT[4])}, 4, {v(vLane)}
    v_add_u32 {v(vT[4])}, {s(sLB)}, {v(vT[4])}
    v_mov_b32 {v(vT[5])}, {s(sLB)}
    s_waitcnt vmcnt(0)
    s_mov_b64 {s(28,2)}, exec
    s_mov_b64 exec, 0xf""")
    k(f"ds_write_b128 {v(vT[4])}, {v(tz,4)} offset:{HC0}")
    k(f"ds_write_b128 {v(vT[4])}, {v(tz,4)} offset:{HC1}")
    k("s_mov_b64 exec, 0x7fffffff")
    k(f"ds_write_b128 {v(vT[4])}, {v(tz,4)} offset:{UC0 + 4112}")
    k(f"ds_write_b128 {v(vT[4])}, {v(tz,4)} offset:{UC1 + 4112}")
    k("s_mov_b64 exec, 1")
    k("s_waitcnt lgkmcnt(0)")
    k(f"ds_write_b32 {v(vT[5])}, {v(vT[3])} offset:{HC0 + HPAD}")
    k(f"ds_write_b32 {v(vT[5])}, {v(vT[3])} offset:{HC1 + HPAD - 4}")
    k(f"s_mov_b64 exec, {s(28,2)}")
    k("s_waitcnt lgkmcnt(0)")
    stamp(k, opts, 1)
    if opts.get("stamp"): k("s_waitcnt lgkmcnt(0)")
    def rdH(f, ip):
        for r in range(2):
            k(f"ds_read_b64 {v(HF[f]+4*ip+2*r,2)}, {v(aH)} offset:{ip*512 + r*8}")
    def rdU(f, ii):
        k(f"ds_read_b128 {v(UF[f]+4*ii,4)}, {v(aU)} offset:{(7-ii)*512}")
    def mf(A, f, ip, ii):
        k(f"v_mfma_f32_16x16x32_bf16 {v(ACC+4*A,4)}, {v(HF[f]+4*ip,4)}, {v(UF[f]+4*ii,4)}, {v(ACC+4*A,4)}")
    def adv():
        k(f"v_add_u32 {v(aH)}, 64, {v(aH)}")
        k(f"v_add_u32 {v(aU)}, 64, {v(aU)}")
    rdH(1, 0)
    for ii in range(8): rdU(1, ii)
    adv()
    def rd_all(f):
        for j in range(8):
            rdH(f, j); rdU(f, j)
    rd_all(0)
    adv()
    k("s_waitcnt lgkmcnt(15)")
    k("s_waitcnt lgkmcnt(0)") if False else None
    k("s_waitcnt lgkmcnt(0)")
    for A in range(8): mf(A, 1, 0, A)
    k(f"s_mov_b32 {s(sRHO)}, 0")
    k.label("L_conv_loop")
    for f in range(2):
        rds = []
        for j in range(8):
            rds.append(("H", j, 0)); rds.append(("H", j, 1)); rds.append(("U", j, 0))
        pairs = [(A, ip) for ip in range(8) for A in range(ip, 8)]
        ri = 0
        for n, (A, ip) in enumerate(pairs):
            mf(A, f, ip, A - ip)
            if ri < len(rds) and n >= 2:
                t, j, r = rds[ri]; ri += 1
                if t == "H":
                    k(f"ds_read_b64 {v(HF[f^1]+4*j+2*r,2)}, {v(aH)} offset:{j*512 + r*8}")
                else:
                    rdU(f ^ 1, j)
        assert ri == len(rds)
        adv()
        k("s_waitcnt lgkmcnt(0)")
    k(f"""s_add_u32 {s(sRHO)}, {s(sRHO)}, 1
    s_cmp_lt_u32 {s(sRHO)}, 4
    s_cbranch_scc1 L_conv_loop""")
    stamp(k, opts, 2)
    selA, selB, selX, vZ = vT[0], vT[1], vT[2], vT[3]
    k(f"""v_and_b32 {v(vT[4])}, 1, {v(vLane)}
    v_cmp_eq_u32 vcc, 1, {v(vT[4])}
    v_mov_b32 {v(vT[5])}, 0x03020100
    v_mov_b32 {v(vT[6])}, 0x07060504
    v_cndmask_b32 {v(selX)}, {v(vT[6])}, {v(vT[5])}, vcc
    v_mov_b32 {v(vT[5])}, 0x01000504
    v_mov_b32 {v(vT[6])}, 0x05040100
    v_cndmask_b32 {v(selA)}, {v(vT[5])}, {v(vT[6])}, vcc
    v_mov_b32 {v(vT[5])}, 0x03020706
    v_mov_b32 {v(vT[6])}, 0x07060302
    v_cndmask_b32 {v(selB)}, {v(vT[5])}, {v(vT[6])}, vcc
    v_bfe_u32 {v(vT[5])}, {v(vLane)}, 1, 3
    v_lshlrev_b32 {v(vZ)}, 6, {v(vT[5])}
    v_lshrrev_b32 {v(vT[5])}, 4, {v(vLane)}
    v_lshl_add_u32 {v(vZ)}, {v(vT[5])}, 4, {v(vZ)}
    v_lshl_add_u32 {v(vZ)}, {v(vT[4])}, 3, {v(vZ)}
    s_lshl_b32 {s(sTMP)}, {s(sCH)}, 12
    s_add_u32 {s(sTMP)}, {s(sTMP)}, {WS_Z}
    s_nop 3""")
    T0 = HF[0]
    for A in range(8):
        a, b, ra, rb, x, y = [T0 + 8*(A % 4) + i for i in range(6)]
        o = UF[0] + 2*A
        k(f"""v_cvt_pk_bf16_f32 {v(a)}, {v(ACC+4*A)}, {v(ACC+4*A+1)}
        v_cvt_pk_bf16_f32 {v(b)}, {v(ACC+4*A+2)}, {v(ACC+4*A+3)}
        s_nop 1
        v_mov_b32_dpp {v(ra)}, {v(a)} quad_perm:[1,0,3,2] row_mask:0xf bank_mask:0xf
        v_mov_b32_dpp {v(rb)}, {v(b)} quad_perm:[1,0,3,2] row_mask:0xf bank_mask:0xf
        v_perm_b32 {v(x)}, {v(a)}, {v(b)}, {v(selX)}
        v_perm_b32 {v(y)}, {v(ra)}, {v(rb)}, {v(selX)}
        v_perm_b32 {v(o)}, {v(x)}, {v(y)}, {v(selA)}
        v_perm_b32 {v(o+1)}, {v(x)}, {v(y)}, {v(selB)}""")
        k(f"buffer_store_dwordx2 {v(o,2)}, {v(vZ)}, {s(sWS,4)}, {s(sTMP)} offen offset:{A*512}")
    if opts.get("stamp"):
        k("s_waitcnt vmcnt(0)")
        stamp(k, opts, 3)
        stamp_flush(k, opts, 4, sWS, sW, vT[0], vT[1])
    return CONV_LDS
```

```python
S, D, H, DH = 2048, 640, 32, 20
GRP = S * 8
PART = 160 * GRP
WS_Q = 0
WS_K = PART
WS_V = 2 * PART
WS_O = 0x800000
WS_UR = 0xC00000
URROW = 4096
WS_WR = 0x1500000
WS_Z = 0x1200000
WS_BYTES = 268435456
WS_STAMP = 0x4000000
QSCALE = 0.22360679774997896 * 1.4426950408889634
import struct
def f32bits(x):
    return struct.unpack("<I", struct.pack("<f", x))[0]
KA_X, KA_WQKV, KA_WO, KA_BQ, KA_BK, KA_BV, KA_SHIFT, KA_SSMK, KA_SSMD, KA_OUT, KA_DBG, KA_WS = [8 * i for i in range(12)]
```

```python
from asm import *
from layout import *
from common import *

WIMG = 20 * 5120
PROJ_LDS = WIMG

def div10(k, vq, vrow, vpc, vtmp):
    k(f"""v_mul_u32_u24 {v(vrow)}, 6554, {v(vq)}
    v_lshrrev_b32 {v(vrow)}, 16, {v(vrow)}
    v_mul_u32_u24 {v(vtmp)}, 10, {v(vrow)}
    v_sub_u32 {v(vpc)}, {v(vq)}, {v(vtmp)}""")

def emit_proj(k, R, opts=None, b3=None):
    opts = opts or {}
    sWO, sWS, sOUT = 4, 8, 12
    sW, sTB, sCB, sTMP, sTMP2, sLW = 16, 17, 18, 19, 20, 21
    vLane = R.alloc()
    vT = [R.alloc() for _ in range(8)]
    stamp(k, opts, 0)
    k(f"s_load_dwordx2 {s(sWO,2)}, s[0:1], {KA_WO}")
    k(f"s_load_dwordx2 {s(sWS,2)}, s[0:1], {KA_WS}")
    k(f"s_load_dwordx2 {s(sOUT,2)}, s[0:1], {KA_OUT}")
    if b3: b3.load_ptrs()
    k(f"v_and_b32 {v(vLane)}, 63, v0")
    wave_id(k, sW, vT[0])
    k(f"""s_and_b32 {s(sTB)}, s2, 7
    s_lshl_b32 {s(sTB)}, {s(sTB)}, 2
    s_bfe_u32 {s(sTMP)}, s2, 0x20003
    s_add_u32 {s(sTB)}, {s(sTB)}, {s(sTMP)}
    s_lshr_b32 {s(sCB)}, s2, 5""")
    k("s_waitcnt lgkmcnt(0)")
    srd(k, sWO, D * D * 2); srd(k, sWS, WS_BYTES); srd(k, sOUT, S * 2 * D * 2)
    if b3: b3.setup()
    k(f"s_cmp_ge_u32 {s(sW)}, 4")
    k("s_cbranch_scc1 L_proj_loader")
    OF = R.alloc(80, 4)
    WF = [R.alloc(20, 4), R.alloc(20, 4)]
    ACC = R.alloc(20, 4)
    aW0, aW1, vO = R.alloc(), R.alloc(), R.alloc()
    k(f"""s_lshl_b32 {s(sTMP)}, {s(sTB)}, 2
    s_add_u32 {s(sTMP)}, {s(sTMP)}, {s(sW)}
    s_mul_i32 {s(sTMP)}, {s(sTMP)}, 20480
    s_add_u32 {s(sTMP)}, {s(sTMP)}, {WS_O}
    v_lshlrev_b32 {v(vO)}, 4, {v(vLane)}""")
    for ks in range(20):
        if ks % 4 == 0 and ks > 0:
            k(f"s_add_u32 {s(sTMP)}, {s(sTMP)}, 4096")
        k(f"buffer_load_dwordx4 {v(OF+4*ks,4)}, {v(vO)}, {s(sWS,4)}, {s(sTMP)} offen offset:{(ks%4)*1024}")
    k(f"""v_lshrrev_b32 {v(vT[0])}, 4, {v(vLane)}
    v_lshlrev_b32 {v(vT[0])}, 2, {v(vT[0])}
    v_bfe_u32 {v(vT[1])}, {v(vLane)}, 2, 2
    v_add_u32 {v(vT[0])}, {v(vT[0])}, {v(vT[1])}
    v_mul_u32_u24 {v(aW0)}, 160, {v(vT[0])}
    v_and_b32 {v(vT[1])}, 3, {v(vLane)}
    v_lshl_add_u32 {v(aW0)}, {v(vT[1])}, 3, {v(aW0)}
    v_add_u32 {v(aW1)}, {10*5120}, {v(aW0)}""")
    for i in range(20):
        k(f"v_mov_b32 {v(ACC+i)}, 0")
    def rd(f, ks):
        a = aW0 if ks < 10 else aW1
        for nt in range(5):
            for r in range(2):
                k(f"ds_read_b64_tr_b16 {v(WF[f]+4*nt+2*r,2)}, {v(a)} offset:{(ks%10)*5120 + r*2560 + nt*32}")
    for ph in range(5):
        k("s_barrier")
        if ph == 0:
            stamp(k, opts, 1)
            if opts.get("stamp"): k("s_waitcnt lgkmcnt(0)")
        rd(0, 4*ph)
        for kk in range(4):
            ks = 4*ph + kk
            f = kk & 1
            if kk < 3:
                rd(f ^ 1, ks + 1)
                k("s_waitcnt lgkmcnt(10)")
            else:
                k("s_waitcnt lgkmcnt(0)")
            if kk == 0:
                k(f"s_waitcnt vmcnt({16 - 4*ph})")
            for nt in range(5):
                k(f"v_mfma_f32_16x16x32_bf16 {v(ACC+4*nt,4)}, {v(WF[f]+4*nt,4)}, {v(OF+4*ks,4)}, {v(ACC+4*nt,4)}")
    stamp(k, opts, 2)
    k(f"""v_and_b32 {v(vT[0])}, 15, {v(vLane)}
    s_lshl_b32 {s(sTMP)}, {s(sTB)}, 6
    s_lshl_b32 {s(sTMP2)}, {s(sW)}, 4
    s_add_u32 {s(sTMP)}, {s(sTMP)}, {s(sTMP2)}
    v_add_u32 {v(vT[0])}, {s(sTMP)}, {v(vT[0])}
    v_mul_u32_u24 {v(vT[0])}, 2560, {v(vT[0])}
    v_lshrrev_b32 {v(vT[1])}, 4, {v(vLane)}
    v_lshl_add_u32 {v(vT[0])}, {v(vT[1])}, 3, {v(vT[0])}
    s_mul_i32 {s(sTMP)}, {s(sCB)}, 160
    s_nop 7""")
    for nt in range(5):
        p = WF[0] + 2*nt
        k(f"v_cvt_pk_bf16_f32 {v(p)}, {v(ACC+4*nt)}, {v(ACC+4*nt+1)}")
        k(f"v_cvt_pk_bf16_f32 {v(p+1)}, {v(ACC+4*nt+2)}, {v(ACC+4*nt+3)}")
        k(f"buffer_store_dwordx2 {v(p,2)}, {v(vT[0])}, {s(sOUT,4)}, {s(sTMP)} offen offset:{nt*32}")
    if opts.get("stamp"):
        k("s_waitcnt vmcnt(0)")
        stamp(k, opts, 3)
        stamp_flush(k, opts, 4, sWS, sW, vT[0], vT[1])
    k("s_branch L_proj_end")
    k.label("L_proj_loader")
    vP = [OF + i for i in range(5)]
    k(f"s_sub_u32 {s(sLW)}, {s(sW)}, 4")
    k(f"s_mul_i32 {s(sTMP2)}, {s(sCB)}, 160")
    for ph in range(5):
        k(f"v_add_u32 {v(vT[0])}, {64*ph}, {v(vLane)}")
        div10(k, vT[0], vT[1], vT[2], vT[3])
        k(f"""v_mul_u32_u24 {v(vP[ph])}, 1280, {v(vT[1])}
        v_lshl_add_u32 {v(vP[ph])}, {v(vT[2])}, 4, {v(vP[ph])}
        v_add_u32 {v(vP[ph])}, {s(sTMP2)}, {v(vP[ph])}""")
    sB, sL = 22, 23
    k(f"""s_mul_i32 {s(sB)}, {s(sLW)}, {32*1280}
    s_mul_i32 {s(sL)}, {s(sLW)}, 5120""")
    for i in range(5):
        for ph in range(5):
            k(f"s_add_u32 m0, {s(sL)}, {i*4*5120 + ph*1024}")
            k(f"s_add_u32 {s(sTMP)}, {s(sB)}, {i*4*32*1280}")
            k(f"buffer_load_dwordx4 {v(vP[ph])}, {s(sWO,4)}, {s(sTMP)} offen lds")
    extra = b3.early(locals()) if b3 else 0
    for i in range(5):
        k(f"s_waitcnt vmcnt({5*(4-i) + extra if i < 4 else 0})")
        k("s_barrier")
    b3regs = (OF + 8 + 3) // 4 * 4
    if b3: b3.late(locals())
    k.label("L_proj_end")
    return 122880 if b3 else PROJ_LDS
```

```python
from asm import *
from layout import *
from common import *

XS = 16384
SLOTB = 32768
NSL = 4
QKV_LDS = NSL * SLOTB

def emit_qkv(k, R, opts=None, b1=None):
    opts = opts or {}
    sX, sWQ, sWS = 4, 8, 12
    sW, sCT, sJ, sTMP, sTMP2, sC, sXO, sSC, sM0 = 16, 17, 18, 19, 20, 21, 22, 23, 24
    sLW = 25; sOB = 26
    vLane = R.alloc()
    vT = [R.alloc() for _ in range(8)]
    stamp(k, opts, 0)
    k(f"s_load_dwordx2 {s(sX,2)}, s[0:1], {KA_X}")
    k(f"s_load_dwordx2 {s(sWQ,2)}, s[0:1], {KA_WQKV}")
    k(f"s_load_dwordx2 {s(sWS,2)}, s[0:1], {KA_WS}")
    if b1: b1.load_ptrs()
    k(f"v_and_b32 {v(vLane)}, 63, v0")
    wave_id(k, sW, vT[0])
    k(f"""s_bfe_u32 {s(sJ)}, s2, 0x20001
    s_lshl_b32 {s(sJ)}, {s(sJ)}, 2
    s_bfe_u32 {s(sTMP)}, s2, 0x20003
    s_add_u32 {s(sJ)}, {s(sJ)}, {s(sTMP)}
    s_and_b32 {s(sCT)}, s2, 1
    s_lshl_b32 {s(sCT)}, {s(sCT)}, 3
    s_lshr_b32 {s(sTMP)}, s2, 5
    s_add_u32 {s(sCT)}, {s(sCT)}, {s(sTMP)}""")
    k("s_waitcnt lgkmcnt(0)")
    srd(k, sX, S * D * 2); srd(k, sWQ, D * 3 * D * 2); srd(k, sWS, WS_BYTES)
    if b1: b1.setup()
    k(f"s_cmp_ge_u32 {s(sCT)}, 15")
    k("s_cbranch_scc1 L_qkv_idle")
    k(f"s_cmp_ge_u32 {s(sW)}, 4")
    k("s_cbranch_scc1 L_qkv_loader")
    aX = [R.alloc() for _ in range(4)]
    aW = [R.alloc() for _ in range(2)]
    F = [dict(X=[R.alloc(4, 4), R.alloc(4, 4)], W=[R.alloc(4, 4), R.alloc(4, 4)]) for _ in range(2)]
    ACC = [[R.alloc(16, 4) for tt in range(2)] for nt in range(2)]
    k(f"""s_and_b32 {s(sTMP)}, {s(sW)}, 1
    s_lshl_b32 {s(sTMP)}, {s(sTMP)}, 13
    v_and_b32 {v(vT[0])}, 31, {v(vLane)}
    v_lshlrev_b32 {v(vT[1])}, 7, {v(vT[0])}
    v_add_u32 {v(vT[1])}, {s(sTMP)}, {v(vT[1])}
    v_bfe_u32 {v(vT[2])}, {v(vLane)}, 1, 3
    v_lshrrev_b32 {v(vT[3])}, 5, {v(vLane)}
    v_xor_b32 {v(vT[2])}, {v(vT[2])}, {v(vT[3])}
    v_lshl_add_u32 {v(aX[0])}, {v(vT[2])}, 4, {v(vT[1])}""")
    for ks in range(1, 4):
        k(f"v_xor_b32 {v(aX[ks])}, {ks << 5}, {v(aX[0])}")
    k(f"""v_bfe_u32 {v(vT[0])}, {v(vLane)}, 2, 2
    v_lshrrev_b32 {v(vT[1])}, 5, {v(vLane)}
    v_lshlrev_b32 {v(vT[1])}, 3, {v(vT[1])}
    v_add_u32 {v(vT[1])}, {v(vT[1])}, {v(vT[0])}
    v_lshlrev_b32 {v(vT[1])}, 8, {v(vT[1])}
    v_add_u32 {v(vT[1])}, {XS}, {v(vT[1])}
    v_lshlrev_b32 {v(vT[0])}, 6, {v(vT[0])}
    v_bfe_u32 {v(vT[2])}, {v(vLane)}, 4, 1
    v_lshlrev_b32 {v(vT[2])}, 2, {v(vT[2])}
    v_and_b32 {v(vT[3])}, 3, {v(vLane)}
    v_add_u32 {v(vT[2])}, {v(vT[2])}, {v(vT[3])}
    s_lshr_b32 {s(sTMP)}, {s(sW)}, 1
    s_lshl_b32 {s(sTMP)}, {s(sTMP)}, 4
    v_add_u32 {v(vT[2])}, {s(sTMP)}, {v(vT[2])}""")
    for nt in range(2):
        k(f"""v_add_u32 {v(vT[3])}, {8*nt}, {v(vT[2])}
        v_lshlrev_b32 {v(vT[3])}, 3, {v(vT[3])}
        v_xor_b32 {v(vT[3])}, {v(vT[3])}, {v(vT[0])}
        v_add_u32 {v(aW[nt])}, {v(vT[3])}, {v(vT[1])}""")
    for nt in range(2):
        for tt in range(2):
            for i in range(16):
                k(f"v_mov_b32 {v(ACC[nt][tt]+i)}, 0")
    def reads(f, ks, par):
        off = par * SLOTB
        for tt in range(2):
            k(f"ds_read_b128 {v(F[f]['X'][tt],4)}, {v(aX[ks])} offset:{off + tt*4096}")
        for nt in range(2):
            for rd in range(2):
                k(f"ds_read_b64_tr_b16 {v(F[f]['W'][nt]+2*rd,2)}, {v(aW[nt])} offset:{off + (16*ks+4*rd)*256}")
    def mfmas(f):
        for nt in range(2):
            for tt in range(2):
                k(f"v_mfma_f32_32x32x16_bf16 {v(ACC[nt][tt],16)}, {v(F[f]['W'][nt],4)}, {v(F[f]['X'][tt],4)}, {v(ACC[nt][tt],16)}")
    k("s_barrier")
    stamp(k, opts, 1)
    if opts.get("stamp"): k("s_waitcnt lgkmcnt(0)")
    reads(0, 0, 0)
    k(f"s_mov_b32 {s(sC)}, 0")
    k.label("L_qkv_loop")
    for par in range(2):
        for ks in range(4):
            f = ks & 1
            if ks < 3:
                reads(f ^ 1, ks + 1, par)
                k("s_waitcnt lgkmcnt(6)")
                mfmas(f)
            else:
                k("s_waitcnt lgkmcnt(0)")
                if par == 1:
                    for a in aX + aW:
                        k(f"v_xor_b32 {v(a)}, {2*SLOTB}, {v(a)}")
                    lab = k.newlabel("qkvlast")
                    k(f"s_cmp_eq_u32 {s(sC)}, 4")
                    k(f"s_cbranch_scc1 {lab}")
                    k("s_barrier")
                    reads(0, 0, 0)
                    k.label(lab)
                else:
                    k("s_barrier")
                    reads(0, 0, 1)
                mfmas(f)
    k(f"""s_add_u32 {s(sC)}, {s(sC)}, 1
    s_cmp_lt_u32 {s(sC)}, 5
    s_cbranch_scc1 L_qkv_loop""")
    stamp(k, opts, 2)
    o8 = aX[0]
    k(f"""s_lshl_b32 {s(sOB)}, {s(sCT)}, 5
    s_lshr_b32 {s(sTMP)}, {s(sW)}, 1
    s_lshl_b32 {s(sTMP)}, {s(sTMP)}, 4
    s_add_u32 {s(sOB)}, {s(sOB)}, {s(sTMP)}
    s_lshl_b32 {s(sOB)}, {s(sOB)}, 14
    s_lshl_b32 {s(sTMP)}, {s(sJ)}, 10
    s_add_u32 {s(sOB)}, {s(sOB)}, {s(sTMP)}
    s_and_b32 {s(sTMP)}, {s(sW)}, 1
    s_lshl_b32 {s(sTMP)}, {s(sTMP)}, 9
    s_add_u32 {s(sOB)}, {s(sOB)}, {s(sTMP)}
    v_and_b32 {v(vT[0])}, 31, {v(vLane)}
    v_lshrrev_b32 {v(vT[1])}, 5, {v(vLane)}
    v_lshlrev_b32 {v(vT[1])}, 14, {v(vT[1])}
    v_lshl_add_u32 {v(o8)}, {v(vT[0])}, 3, {v(vT[1])}
    s_cmp_lt_u32 {s(sCT)}, 5
    s_cselect_b32 {s(sSC)}, {f32bits(QSCALE):#x}, 1.0
    s_nop 7""")
    PK = F[0]['X'][0]
    for nt in range(2):
        for tt in range(2):
            A = ACC[nt][tt]
            for i in range(4):
                p = PK + ((nt*2+tt)*4 + i) * 2
                for e in range(4):
                    k(f"v_mul_f32 {v(A+4*i+e)}, {s(sSC)}, {v(A+4*i+e)}")
                k(f"v_cvt_pk_bf16_f32 {v(p)}, {v(A+4*i)}, {v(A+4*i+1)}")
                k(f"v_cvt_pk_bf16_f32 {v(p+1)}, {v(A+4*i+2)}, {v(A+4*i+3)}")
                k(f"s_add_u32 {s(sTMP)}, {s(sOB)}, {(8*nt+2*i)*GRP}")
                k(f"buffer_store_dwordx2 {v(p,2)}, {v(o8)}, {s(sWS,4)}, {s(sTMP)} offen offset:{tt*256}")
    if opts.get("stamp"):
        k("s_waitcnt vmcnt(0)")
        stamp(k, opts, 3)
        stamp_flush(k, opts, 4, sWS, sW, vT[0], vT[1])
    k("s_branch L_qkv_end")
    k.label("L_qkv_loader")
    vXo, vWo = F[0]['X'][0], F[0]['X'][1]
    k(f"""s_sub_u32 {s(sLW)}, {s(sW)}, 4
    v_lshrrev_b32 {v(vT[0])}, 3, {v(vLane)}
    s_lshl_b32 {s(sTMP)}, {s(sJ)}, 7
    s_lshl_b32 {s(sTMP2)}, {s(sLW)}, 3
    s_add_u32 {s(sTMP)}, {s(sTMP)}, {s(sTMP2)}
    v_add_u32 {v(vT[1])}, {s(sTMP)}, {v(vT[0])}
    v_mul_u32_u24 {v(vT[1])}, 1280, {v(vT[1])}
    v_lshrrev_b32 {v(vT[2])}, 1, {v(vT[0])}
    s_and_b32 {s(sTMP2)}, {s(sLW)}, 1
    s_lshl_b32 {s(sTMP2)}, {s(sTMP2)}, 2
    v_add_u32 {v(vT[2])}, {s(sTMP2)}, {v(vT[2])}
    v_and_b32 {v(vT[3])}, 7, {v(vLane)}
    v_xor_b32 {v(vT[3])}, {v(vT[3])}, {v(vT[2])}
    v_lshl_add_u32 {v(vXo)}, {v(vT[3])}, 4, {v(vT[1])}""")
    k(f"""v_lshrrev_b32 {v(vT[0])}, 4, {v(vLane)}
    v_and_b32 {v(vT[1])}, 15, {v(vLane)}
    v_lshlrev_b32 {v(vT[2])}, 2, {v(vT[0])}
    v_xor_b32 {v(vT[1])}, {v(vT[1])}, {v(vT[2])}
    v_lshlrev_b32 {v(vWo)}, 4, {v(vT[1])}
    s_lshl_b32 {s(sTMP)}, {s(sCT)}, 8
    v_add_u32 {v(vWo)}, {s(sTMP)}, {v(vWo)}
    s_lshl_b32 {s(sTMP)}, {s(sLW)}, 2
    v_add_u32 {v(vT[0])}, {s(sTMP)}, {v(vT[0])}
    v_mul_u32_u24 {v(vT[0])}, 3840, {v(vT[0])}
    v_add_u32 {v(vWo)}, {v(vWo)}, {v(vT[0])}
    s_lshl_b32 {s(sM0)}, {s(sLW)}, 10""")
    def issue(c):
        sl = (c % NSL) * SLOTB
        for i in range(4):
            k(f"s_add_u32 m0, {s(sM0)}, {sl + i*4096}")
            k(f"s_mov_b32 {s(sTMP)}, {c*128 + i*40960}")
            k(f"buffer_load_dwordx4 {v(vXo)}, {s(sX,4)}, {s(sTMP)} offen lds")
            k(f"s_add_u32 m0, {s(sM0)}, {sl + XS + i*4096}")
            k(f"s_mov_b32 {s(sTMP)}, {(c*64 + i*16)*3840}")
            k(f"buffer_load_dwordx4 {v(vWo)}, {s(sWQ,4)}, {s(sTMP)} offen lds")
    issue(0); issue(1)
    k("s_waitcnt vmcnt(8)")
    k("s_barrier")
    issue(2); issue(3)
    b1regs = F[1]['X'][0]
    extra = b1.early(locals(), "m") if b1 else 0
    for c in range(9):
        outstanding = min(c + 3, 9) - (c + 1)
        k(f"s_waitcnt vmcnt({8*outstanding + (extra if c <= 2 else 0)})")
        k("s_barrier")
        if c + 4 <= 9:
            issue(c + 4)
    if b1: b1.late(locals(), "m")
    k("s_branch L_qkv_end")
    k.label("L_qkv_idle")
    if b1:
        k(f"s_cmp_lt_u32 {s(sW)}, 4")
        k("s_cbranch_scc1 L_qkv_end")
        k(f"s_sub_u32 {s(sLW)}, {s(sW)}, 4")
        b1.early(locals(), "i")
        k("s_waitcnt vmcnt(0)")
        k("s_barrier")
        b1.late(locals(), "i")
    k.label("L_qkv_end")
    return max(QKV_LDS, 131072 + 2*12288) if b1 else QKV_LDS
```

```python
import sys
from asm import *
from layout import *
import qkv, b1 as b1m, attn, conv, proj, b3 as b3m

HEADER = """; Kernarg layout (96 bytes, pointers only): A_x, A_wqkv, A_wo, B_q, B_k, B_v, B_shift_k, B_ssm_k, B_ssm_D, d_out, d_debug, d_ws
"""
def kernel(name, body, opts):
    k = Asm()
    k.uid = abs(hash(name)) % 1000 * 1000
    k.lines.append(entry(name))
    k("s_cmp_ge_u32 s2, 256")
    k(f"s_cbranch_scc1 L_{name}_exit")
    hi, lds = body(k)
    k.label(f"L_{name}_exit")
    k("s_endpgm")
    return k.text() + kd(name, hi), lds
def build(opts=None):
    opts = opts or {}
    def k1(k):
        R = Regs(1); lds = qkv.emit_qkv(k, R, opts, b1m.B1(k, R, opts)); return R.hi, lds
    def k2(k):
        R = Regs(1)
        l1 = conv.emit_conv(k, R, opts, end_label="L_conv_end")
        k.label("L_conv_end")
        k("s_waitcnt vmcnt(0) lgkmcnt(0)")
        k("s_barrier")
        R2 = Regs(1)
        l2 = attn.emit_attn(k, R2, opts)
        return max(R.hi, R2.hi), max(l1, l2)
    def k3(k):
        R = Regs(1); lds = proj.emit_proj(k, R, opts, b3m.B3(k, R, opts)); return R.hi, lds
    names = ["qkv_kernel", "attn_kernel", "proj_kernel"]
    parts = [kernel(n, b, opts) for n, b in zip(names, (k1, k2, k3))]
    launch = "".join(f"; @launch kernel={n} grid=(256,1,1) block=(512,1,1) lds={p[1]}\n" for n, p in zip(names, parts))
    src = HEADER + launch + '.amdgcn_target "amdgcn-amd-amdhsa--gfx950"\n.text\n' + "".join(p[0] for p in parts)
    return src, names, [p[1] for p in parts]
if __name__ == "__main__":
    src, names, lds = build()
    out = sys.argv[1] if len(sys.argv) > 1 else "concat_heads__softmax_full_mha__ssm_conv_h3__prompt.s"
    open(out, "w").write(src)
    print(names, lds, len(src))
```

```python
from f_common import *
from sync import *

GS = 1024 + 32
HALF = 11 * GS
SLOT = 2 * HALF
NSLOT = 3
XCH = 122880
PRIV = XCH
PRIVSZ = 3072
ATTN_LDS = XCH + 8 * 3072

def emit_attn(k, opts):
    R = Regs(4)
    sHEAD, sT, sC, sSLOT, sTMP, sTMP2, sKH, sQG, sQB = 12, 18, 19, 13, 14, 15, 16, 17, 33
    sMSK = 20; sMSK2 = 22
    sSRC = [24, 25, 26]; sDST = [27, 28, 29]; sDO = 30; sKV0 = 31; sND = 32
    aK1c, aK2c, aVc, aK1n, aK2n, aVn = [R.alloc() for _ in range(6)]
    lK1, lK2, lV, vDMA = [R.alloc() for _ in range(4)]
    vT = [R.alloc() for _ in range(6)]
    Q1 = [R.alloc(4, 4), R.alloc(4, 4)]
    K1 = R.alloc(4, 4)
    Q2 = [R.alloc(2, 2), R.alloc(2, 2)]
    K2 = R.alloc(2, 2)
    V = R.alloc(8, 4)
    P = [R.alloc(8, 4), R.alloc(8, 4)]
    SS = [[R.alloc(16, 4), R.alloc(16, 4)], [R.alloc(16, 4), R.alloc(16, 4)]]
    O = [R.alloc(16, 4), R.alloc(16, 4)]

    k(f"""s_and_b32 {s(sHEAD)}, s2, 7
    s_lshl_b32 {s(sHEAD)}, {s(sHEAD)}, 2
    s_bfe_u32 {s(sTMP)}, s2, 0x20003
    s_add_u32 {s(sHEAD)}, {s(sHEAD)}, {s(sTMP)}
    s_lshr_b32 {s(sQB)}, s2, 5
    s_lshl_b32 {s(sT)}, {s(sQB)}, 3
    s_and_b32 {s(sQG)}, {s(sW)}, 3
    s_lshr_b32 {s(sKH)}, {s(sW)}, 2
    s_lshl_b32 {s(sTMP)}, {s(sQG)}, 1
    s_add_u32 {s(sT)}, {s(sT)}, {s(sTMP)}
    v_lshlrev_b32 {v(vDMA)}, 4, {v(vLane)}
    v_and_b32 {v(vT[0])}, 31, {v(vLane)}
    v_lshlrev_b32 {v(lK2)}, 3, {v(vT[0])}
    v_lshrrev_b32 {v(vT[1])}, 5, {v(vLane)}""")
    vQ = vT[2]
    k(f"""v_lshlrev_b32 {v(vQ)}, 15, {v(vT[1])}
    v_add_u32 {v(vQ)}, {v(vQ)}, {v(lK2)}
    s_mul_i32 {s(sKV0)}, {s(sHEAD)}, {5*GRP}
    s_lshl_b32 {s(sTMP)}, {s(sT)}, 8
    s_add_u32 {s(sTMP)}, {s(sTMP)}, {s(sKV0)}
    s_add_u32 {s(sTMP2)}, {s(sTMP)}, {GRP}""")
    for i in range(3):
        k(f"""s_add_u32 {s(sDST[i])}, {s(sW)}, {8*i}
        s_cmp_ge_u32 {s(sDST[i])}, 20
        s_cselect_b32 {s(sND)}, 8, 0
        s_sub_u32 {s(sDST[i])}, {s(sDST[i])}, {s(sND)}
        s_cmp_ge_u32 {s(sDST[i])}, 10
        s_cselect_b32 {s(sSRC[i])}, 1, 0
        s_mul_i32 {s(sND)}, {s(sSRC[i])}, 10
        s_sub_u32 {s(sDST[i])}, {s(sDST[i])}, {s(sND)}
        s_mul_i32 {s(sND)}, {s(sSRC[i])}, {HALF}
        s_lshl_b32 {s(sSRC[i])}, {s(sSRC[i])}, 13
        s_add_u32 {s(sSRC[i])}, {s(sSRC[i])}, {s(sKV0)}
        s_add_u32 {s(sSRC[i])}, {s(sSRC[i])}, {WS_K}
        s_cmp_ge_u32 {s(sDST[i])}, 5
        s_cselect_b32 {s(sDO)}, {PART - 5*GRP}, 0
        s_add_u32 {s(sSRC[i])}, {s(sSRC[i])}, {s(sDO)}
        s_lshl_b32 {s(sDO)}, {s(sDST[i])}, 14
        s_add_u32 {s(sSRC[i])}, {s(sSRC[i])}, {s(sDO)}
        s_mul_i32 {s(sDST[i])}, {s(sDST[i])}, {GS}
        s_add_u32 {s(sDST[i])}, {s(sDST[i])}, {s(sND)}""")
    lab = k.newlabel("nopoll")
    k(f"""s_cmp_lg_u32 {s(sW)}, 7
    s_cbranch_scc1 {lab}
    v_min_u32 {v(vT[3])}, 5, {v(vLane)}
    v_and_b32 {v(vT[4])}, 1, {v(vT[3])}
    v_lshlrev_b32 {v(vT[4])}, 2, {v(vT[4])}
    s_mul_i32 {s(sND)}, {s(sHEAD)}, 5
    v_add_u32 {v(vT[4])}, {s(sND)}, {v(vT[4])}
    v_lshrrev_b32 {v(vT[4])}, 5, {v(vT[4])}
    v_lshrrev_b32 {v(vT[3])}, 1, {v(vT[3])}
    v_mul_u32_u24 {v(vT[3])}, 5, {v(vT[3])}
    v_add_u32 {v(vT[3])}, {v(vT[3])}, {v(vT[4])}
    v_lshlrev_b32 {v(vT[3])}, 8, {v(vT[3])}""")
    wait_counters(k, vT[3], 16)
    k.label(lab)
    k("s_barrier")
    stamp(k, opts, 4)
    for t in range(2):
        k(f"buffer_load_dwordx2 {v(Q1[t],2)}, {v(vQ)}, {s(sWS,4)}, {s(sTMP)} offen offset:{t*256}{SC1}")
        k(f"buffer_load_dwordx2 {v(Q1[t]+2,2)}, {v(vQ)}, {s(sWS,4)}, {s(sTMP2)} offen offset:{t*256}{SC1}")
    k(f"s_add_u32 {s(sTMP)}, {s(sTMP)}, {4*GRP}")
    for t in range(2):
        k(f"buffer_load_dwordx2 {v(Q2[t],2)}, {v(lK2)}, {s(sWS,4)}, {s(sTMP)} offen offset:{t*256}{SC1}")
    def dma_piece(i, slot_const=None):
        lab = None
        if slot_const is None:
            k(f"s_add_u32 m0, {s(sDST[i])}, {s(sSLOT)}")
        else:
            k(f"s_add_u32 m0, {s(sDST[i])}, {slot_const}")
        k("s_nop 0")
        k(f"buffer_load_dwordx4 {v(vDMA)}, {s(sWS,4)}, {s(sSRC[i])} offen{SC1} lds")
        k(f"s_add_u32 {s(sSRC[i])}, {s(sSRC[i])}, 1024")
        if lab: k.label(lab)
    for i in range(3):
        dma_piece(i, 0)
    for i in range(2):
        dma_piece(i, SLOT)
    k(f"""s_cmp_ge_u32 {s(sW)}, 6
    s_cbranch_scc1 L_attn_noones
    s_mul_i32 {s(sTMP)}, {s(sW)}, {HALF}
    s_add_u32 {s(sTMP)}, {s(sTMP)}, {10*GS}
    v_add_u32 {v(vT[0])}, {s(sTMP)}, {v(vDMA)}
    v_mov_b32 {v(V)}, 0x3f80
    v_mov_b32 {v(V+1)}, 0
    v_mov_b32 {v(V+2)}, 0x3f80
    v_mov_b32 {v(V+3)}, 0
    ds_write_b128 {v(vT[0])}, {v(V,4)}""")
    k.label("L_attn_noones")
    k(f"""s_mul_i32 {s(sTMP)}, {s(sKH)}, {HALF}
    v_mul_u32_u24 {v(lK1)}, {2*GS}, {v(vT[1])}
    v_add_u32 {v(lK1)}, {v(lK1)}, {v(lK2)}
    v_add_u32 {v(lK1)}, {s(sTMP)}, {v(lK1)}
    v_add_u32 {v(lK2)}, {4*GS}, {v(lK2)}
    v_add_u32 {v(lK2)}, {s(sTMP)}, {v(lK2)}
    v_lshlrev_b32 {v(vT[0])}, 2, {v(vT[1])}
    v_bfe_u32 {v(vT[3])}, {v(vLane)}, 2, 2
    v_add_u32 {v(vT[0])}, {v(vT[0])}, {v(vT[3])}
    v_lshlrev_b32 {v(lV)}, 3, {v(vT[0])}
    v_and_b32 {v(vT[0])}, 3, {v(vLane)}
    v_and_b32 {v(vT[3])}, 1, {v(vLane)}
    v_add_u32 {v(vT[3])}, 4, {v(vT[3])}
    v_bfe_u32 {v(vT[4])}, {v(vLane)}, 4, 1
    v_cmp_eq_u32 vcc, 1, {v(vT[4])}
    s_add_u32 {s(sTMP)}, {s(sTMP)}, {5*GS}
    s_nop 0
    v_cndmask_b32 {v(vT[0])}, {v(vT[0])}, {v(vT[3])}, vcc
    v_mul_u32_u24 {v(vT[0])}, {GS}, {v(vT[0])}
    v_add_u32 {v(lV)}, {v(lV)}, {v(vT[0])}
    v_add_u32 {v(lV)}, {s(sTMP)}, {v(lV)}
    v_mov_b32 {v(aK1c)}, {v(lK1)}
    v_mov_b32 {v(aK2c)}, {v(lK2)}
    v_mov_b32 {v(aVc)}, {v(lV)}
    v_add_u32 {v(aK1n)}, {SLOT}, {v(lK1)}
    v_add_u32 {v(aK2n)}, {SLOT}, {v(lK2)}
    v_add_u32 {v(aVn)}, {SLOT}, {v(lV)}
    s_mov_b32 {s(sSLOT)}, {2*SLOT}
    s_mov_b32 {s(sND)}, {SLOT}
    s_mov_b32 {s(sC)}, 0""")
    for t in range(2):
        for i in range(16):
            k(f"v_mov_b32 {v(O[t]+i)}, 0")
    k(f"v_mov_b32 {v(SS[1][1]+14)}, 0")
    k(f"v_mov_b32 {v(SS[1][1]+15)}, 0")
    for i in range(4):
        k(f"v_mov_b32 {v(P[1]+4+i)}, 0")
        k(f"v_mov_b32 {v(V+4+i)}, 0")
    k("s_waitcnt vmcnt(2) lgkmcnt(0)")
    k(f"v_cmp_gt_u32 vcc, 32, {v(vLane)}")
    k("s_nop 1")
    for t in range(2):
        k(f"v_cndmask_b32 {v(Q2[t])}, 0, {v(Q2[t])}, vcc")
        k(f"v_cndmask_b32 {v(Q2[t]+1)}, 0, {v(Q2[t]+1)}, vcc")
    k("s_barrier")
    def qk1(dst, t, cop="0"):
        k(f"v_mfma_f32_32x32x16_bf16 {v(dst,16)}, {v(K1,4)}, {v(Q1[t],4)}, {cop}")
    def qk2(dst, t):
        k(f"v_mfma_f32_32x32x8_bf16 {v(dst,16)}, {v(K2,2)}, {v(Q2[t],2)}, {v(dst,16)}")
    def pv(t, half):
        k(f"v_mfma_f32_32x32x16_bf16 {v(O[t],16)}, {v(V+4*half,4)}, {v(P[t]+4*half,4)}, {v(O[t],16)}")
    inloop = [False]
    def rdK1(tile, nxt):
        if inloop[0] and opts.get("nolds"): return
        a = aK1n if nxt else aK1c
        k(f"ds_read_b64 {v(K1,2)}, {v(a)} offset:{tile*256}")
        k(f"ds_read_b64 {v(K1+2,2)}, {v(a)} offset:{tile*256 + GS}")
    def rdK2(tile, nxt):
        if inloop[0] and opts.get("nolds"): return
        k(f"ds_read_b64 {v(K2,2)}, {v(aK2n if nxt else aK2c)} offset:{tile*256}")
    def rdV(tile, nxt, half):
        if inloop[0] and opts.get("nolds"): return
        a = aVn if nxt else aVc
        for q in (2*half, 2*half+1):
            k(f"ds_read_b64_tr_b16 {v(V+2*q,2)}, {v(a)} offset:{tile*256 + q*64}")
    rdK1(0, False); rdK2(0, False)
    k("s_waitcnt lgkmcnt(0)")
    for t in range(2):
        qk1(SS[0][t], t); qk2(SS[0][t], t)
    rdK1(1, False); rdK2(1, False); rdV(0, False, 0)
    k("s_waitcnt lgkmcnt(0)")
    k("s_nop 7")
    def setprioA(p):
        lab = k.newlabel("pa")
        k(f"s_cmp_lt_u32 {s(sW)}, 4")
        k(f"s_cbranch_scc0 {lab}")
        k(f"s_setprio {p}")
        k.label(lab)
    bal = opts.get("bal")
    if bal is not None:
        lab = k.newlabel("pb")
        k(f"s_setprio 2")
        k(f"s_cmp_lt_u32 {s(sW)}, 4")
        k(f"s_cbranch_scc1 {lab}")
        k(f"s_setprio 1")
        k.label(lab)
    k(".p2align 6")
    k.label("L_attn_chunk")
    inloop[0] = True
    for i in range(4):
        cur = SS[i & 1]; nxt = SS[(i + 1) & 1]; prv = nxt
        def e(t, r): k(f"v_exp_f32 {v(cur[t]+r)}, {v(cur[t]+r)}")
        def c(t, p, buf=None):
            b = (buf or cur)[t]
            k(f"v_cvt_pk_bf16_f32 {v(P[t]+p)}, {v(b+2*p)}, {v(b+2*p+1)}")
        t1 = i + 1; t2 = i + 2
        if bal is not None and i == bal // 8:
            pass
        k("s_waitcnt lgkmcnt(3)")
        qk1(nxt[0], 0)
        e(0,0)
        c(1, 7, prv)
        e(0,1); e(0,2); c(0,0); e(0,3)
        pv(1, 1)
        rdV(i, False, 1)
        e(0,4); c(0,1); e(0,5); e(0,6); c(0,2); e(0,7)
        qk1(nxt[1], 1)
        if i == 2:
            if not opts.get("nobar"):
                k("s_waitcnt vmcnt(0)")
                k("s_barrier")
            if bal is not None: setprioA(2)
        rdK1(t2 % 4, t2 >= 4)
        dm = {2: 0, 3: 1, 0: 2}
        if i in dm and not opts.get("nodma"):
            if i == 0:
                k(f"s_add_u32 m0, {s(sDST[2])}, {s(sND)}")
                k("s_nop 0")
                k(f"buffer_load_dwordx4 {v(vDMA)}, {s(sWS,4)}, {s(sSRC[2])} offen{SC1} lds")
                k(f"s_add_u32 {s(sSRC[2])}, {s(sSRC[2])}, 1024")
            else:
                dma_piece(dm[i])
        e(0,8); c(0,3); e(0,9); e(0,10); c(0,4); e(0,11)
        k("s_waitcnt lgkmcnt(4)")
        pv(0, 0)
        e(0,12); c(0,5); e(0,13); e(0,14); c(0,6); e(0,15)
        qk2(nxt[0], 0)
        if bal is not None and i == bal: setprioA(0)
        e(1,0); c(0,7); e(1,1); e(1,2); c(1,0); e(1,3)
        k("s_waitcnt lgkmcnt(2)")
        pv(0, 1)
        e(1,4); c(1,1); e(1,5); e(1,6); c(1,2); e(1,7)
        qk2(nxt[1], 1)
        rdK2(t2 % 4, t2 >= 4)
        e(1,8); c(1,3); e(1,9); e(1,10); c(1,4); e(1,11)
        pv(1, 0)
        rdV(t1 % 4, t1 >= 4, 0)
        e(1,12); c(1,5); e(1,13); e(1,14); c(1,6); e(1,15)
    inloop[0] = False
    k(f"""v_mov_b32 {v(aK1c)}, {v(aK1n)}
    v_mov_b32 {v(aK2c)}, {v(aK2n)}
    v_mov_b32 {v(aVc)}, {v(aVn)}
    v_add_u32 {v(aK1n)}, {s(sSLOT)}, {v(lK1)}
    v_add_u32 {v(aK2n)}, {s(sSLOT)}, {v(lK2)}
    v_add_u32 {v(aVn)}, {s(sSLOT)}, {v(lV)}
    s_mov_b32 {s(sND)}, {s(sSLOT)}
    s_add_u32 {s(sSLOT)}, {s(sSLOT)}, {SLOT}
    s_cmp_eq_u32 {s(sSLOT)}, {3*SLOT}
    s_cselect_b32 {s(sSLOT)}, 0, {s(sSLOT)}
    s_add_u32 {s(sC)}, {s(sC)}, 1
    s_cmp_lt_u32 {s(sC)}, 8
    s_cbranch_scc1 L_attn_chunk""")
    last = SS[1]
    k(f"v_cvt_pk_bf16_f32 {v(P[1]+7)}, {v(last[1]+14)}, {v(last[1]+15)}")
    k("s_waitcnt lgkmcnt(0)")
    k("s_nop 1")
    pv(1, 1)
    stamp(k, opts, 5)
    if bal is not None: k("s_setprio 0")
    vA = vT[2]; vL = vT[0]; vX = vT[1]
    OK_ = SS[0][0]
    k(f"""s_mul_i32 {s(sTMP)}, {s(sW)}, 3072
    s_add_u32 {s(sTMP)}, {s(sTMP)}, {XCH}
    v_add_u32 {v(vA)}, {s(sTMP)}, {v(vDMA)}
    s_nop 15
    s_cmp_ge_u32 {s(sW)}, 4
    s_cbranch_scc1 L_attn_xb""")
    for q in range(3):
        k(f"ds_write_b128 {v(vA)}, {v(O[1]+4*q,4)} offset:{q*1024}")
    for i in range(12):
        k(f"v_mov_b32 {v(OK_+i)}, {v(O[0]+i)}")
    k("s_branch L_attn_xc")
    k.label("L_attn_xb")
    for q in range(3):
        k(f"ds_write_b128 {v(vA)}, {v(O[0]+4*q,4)} offset:{q*1024}")
    for i in range(12):
        k(f"v_mov_b32 {v(OK_+i)}, {v(O[1]+i)}")
    for i in range(4):
        k(f"v_mov_b32 {v(Q1[0]+i)}, {v(Q1[1]+i)}")
    for i in range(2):
        k(f"v_mov_b32 {v(Q2[0]+i)}, {v(Q2[1]+i)}")
    k(f"s_add_u32 {s(sT)}, {s(sT)}, 1")
    k.label("L_attn_xc")
    OO = O[0]
    k(f"""s_xor_b32 {s(sTMP)}, {s(sW)}, 4
    s_mul_i32 {s(sTMP)}, {s(sTMP)}, 3072
    s_add_u32 {s(sTMP)}, {s(sTMP)}, {XCH}
    v_add_u32 {v(vX)}, {s(sTMP)}, {v(vDMA)}
    s_waitcnt vmcnt(0) lgkmcnt(0)
    s_barrier""")
    if "after_xch" in opts: opts["after_xch"](k)
    for q in range(3):
        k(f"ds_read_b128 {v(OO+4*q,4)}, {v(vX)} offset:{q*1024}")
    k("s_waitcnt lgkmcnt(0)")
    for i in range(12):
        k(f"v_add_f32 {v(OO+i)}, {v(OO+i)}, {v(OK_+i)}")
    def get_l():
        k(f"""v_mov_b32 {v(vX)}, {v(OO+8)}
        v_mov_b32 {v(vL)}, {v(OO+8)}
        s_nop 1
        v_permlane32_swap_b32 {v(vX)}, {v(vL)}""")
    get_l()
    k(f"v_mul_f32 {v(vX)}, 0, {v(OO)}")
    for i in range(1, 12):
        k(f"v_fma_f32 {v(vX)}, {v(OO+i)}, 0, {v(vX)}")
    k(f"""s_mov_b32 {s(sTMP)}, {f32bits(2.0**-90):#x}
    s_mov_b32 {s(sTMP2)}, {f32bits(2.0**90):#x}
    v_cmp_le_f32 {s(sMSK,2)}, {s(sTMP)}, {v(vL)}
    v_cmp_ge_f32 {s(sMSK2,2)}, {s(sTMP2)}, {v(vL)}
    v_cmp_o_f32 vcc, {v(vX)}, {v(vX)}
    s_nop 1
    s_and_b64 {s(sMSK,2)}, {s(sMSK,2)}, {s(sMSK2,2)}
    s_and_b64 {s(sMSK,2)}, {s(sMSK,2)}, vcc
    s_cmp_eq_u64 {s(sMSK,2)}, -1
    s_cbranch_scc1 L_attn_fin""")
    C = SS[1][0]; SA = SS[1][1]
    sPB = sSLOT
    k(f"""s_xor_b32 {s(sTMP)}, {s(sW)}, 4
    s_mul_i32 {s(sTMP)}, {s(sTMP)}, 3072
    s_add_u32 {s(sPB)}, {s(sTMP)}, {XCH}""")
    aP1, aP2, aPV, vS = aK1c, aK2c, aVc, aK1n
    k(f"""v_and_b32 {v(vT[3])}, 31, {v(vLane)}
    v_lshlrev_b32 {v(vT[3])}, 3, {v(vT[3])}
    v_lshrrev_b32 {v(vT[4])}, 5, {v(vLane)}
    v_lshl_add_u32 {v(aP1)}, {v(vT[4])}, 9, {v(vT[3])}
    v_add_u32 {v(aP1)}, {s(sPB)}, {v(aP1)}
    v_add_u32 {v(aP2)}, 1024, {v(vT[3])}
    v_add_u32 {v(aP2)}, {s(sPB)}, {v(aP2)}
    v_lshlrev_b32 {v(vT[4])}, 2, {v(vT[4])}
    v_bfe_u32 {v(vT[5])}, {v(vLane)}, 2, 2
    v_add_u32 {v(vT[4])}, {v(vT[4])}, {v(vT[5])}
    v_lshlrev_b32 {v(aPV)}, 3, {v(vT[4])}
    v_and_b32 {v(vT[4])}, 3, {v(vLane)}
    v_and_b32 {v(vT[5])}, 1, {v(vLane)}
    v_add_u32 {v(vT[5])}, 4, {v(vT[5])}
    v_bfe_u32 {v(vX)}, {v(vLane)}, 4, 1
    v_cmp_eq_u32 vcc, 1, {v(vX)}
    s_nop 1
    v_cndmask_b32 {v(vT[4])}, {v(vT[4])}, {v(vT[5])}, vcc
    v_lshl_add_u32 {v(aPV)}, {v(vT[4])}, 8, {v(aPV)}
    v_add_u32 {v(aPV)}, 1280, {v(aPV)}
    v_add_u32 {v(aPV)}, {s(sPB)}, {v(aPV)}
    v_lshrrev_b32 {v(vT[4])}, 4, {v(vLane)}
    v_lshlrev_b32 {v(vT[4])}, 14, {v(vT[4])}
    v_and_b32 {v(vT[5])}, 15, {v(vLane)}
    v_lshl_add_u32 {v(vS)}, {v(vT[5])}, 4, {v(vT[4])}
    v_mov_b32 {v(V)}, 0x3f80
    v_mov_b32 {v(V+1)}, 0
    v_lshlrev_b32 {v(vT[4])}, 3, {v(vLane)}
    v_add_u32 {v(vT[4])}, {s(sPB)}, {v(vT[4])}
    v_cmp_gt_u32 vcc, 32, {v(vLane)}
    s_and_saveexec_b64 {s(sMSK,2)}, vcc
    ds_write_b64 {v(vT[4])}, {v(V,2)} offset:2560
    s_mov_b64 exec, {s(sMSK,2)}""")
    def slow_load():
        k(f"s_add_u32 m0, {s(sPB)}, 0")
        k(f"s_add_u32 {s(sTMP)}, {s(sKV0)}, {s(sND)}")
        k(f"s_add_u32 {s(sTMP)}, {s(sTMP)}, {WS_K}")
        k(f"buffer_load_dwordx4 {v(vS)}, {s(sWS,4)}, {s(sTMP)} offen{SC1} lds")
        k(f"s_add_u32 m0, {s(sPB)}, 1280")
        k(f"s_add_u32 {s(sTMP2)}, {s(sTMP)}, {PART}")
        k(f"buffer_load_dwordx4 {v(vS)}, {s(sWS,4)}, {s(sTMP2)} offen{SC1} lds")
        k(f"s_mov_b64 {s(sMSK,2)}, exec")
        k(f"s_mov_b64 exec, 0xffff")
        k(f"s_add_u32 m0, {s(sPB)}, 1024")
        k(f"s_add_u32 {s(sTMP)}, {s(sTMP)}, {4*GRP}")
        k(f"buffer_load_dwordx4 {v(vS)}, {s(sWS,4)}, {s(sTMP)} offen{SC1} lds")
        k(f"s_add_u32 m0, {s(sPB)}, {1280+1024}")
        k(f"s_add_u32 {s(sTMP2)}, {s(sTMP2)}, {4*GRP}")
        k(f"buffer_load_dwordx4 {v(vS)}, {s(sWS,4)}, {s(sTMP2)} offen{SC1} lds")
        k(f"s_mov_b64 exec, {s(sMSK,2)}")
        k(f"s_add_u32 {s(sND)}, {s(sND)}, 256")
        k("s_waitcnt vmcnt(0) lgkmcnt(0)")
        k(f"ds_read_b64 {v(K1,2)}, {v(aP1)}")
        k(f"ds_read_b64 {v(K1+2,2)}, {v(aP1)} offset:256")
        k(f"ds_read_b64 {v(K2,2)}, {v(aP2)}")
    vM = vT[3]
    k(f"""v_mov_b32 {v(vM)}, 0xff800000
    s_mov_b32 {s(sND)}, 0
    s_mov_b32 {s(sC)}, 0""")
    k.label("L_attn_maxpass")
    slow_load()
    k("s_waitcnt lgkmcnt(0)")
    qk1(SA, 0); qk2(SA, 0)
    k("s_nop 15")
    for i in range(8):
        k(f"v_max3_f32 {v(vM)}, {v(SA+2*i)}, {v(SA+2*i+1)}, {v(vM)}")
    k(f"""s_add_u32 {s(sC)}, {s(sC)}, 1
    s_cmp_lt_u32 {s(sC)}, 64
    s_cbranch_scc1 L_attn_maxpass
    v_mov_b32 {v(vX)}, {v(vM)}
    s_nop 1
    v_permlane32_swap_b32 {v(vX)}, {v(vM)}
    s_nop 1
    v_max_f32 {v(vM)}, {v(vM)}, {v(vX)}
    s_mov_b32 {s(sND)}, 0
    s_mov_b32 {s(sC)}, 0""")
    for i in range(16):
        k(f"v_sub_f32 {v(C+i)}, 0, {v(vM)}")
        k(f"v_mov_b32 {v(OO+i)}, 0")
    k.label("L_attn_slow2")
    slow_load()
    for q in range(4):
        k(f"ds_read_b64_tr_b16 {v(V+2*q,2)}, {v(aPV)} offset:{q*64}")
    k("s_waitcnt lgkmcnt(0)")
    qk1(SA, 0, v(C, 16)); qk2(SA, 0)
    k("s_nop 15")
    for i in range(16):
        k(f"v_exp_f32 {v(SA+i)}, {v(SA+i)}")
    k("s_nop 0")
    for p in range(8):
        k(f"v_cvt_pk_bf16_f32 {v(P[0]+p)}, {v(SA+2*p)}, {v(SA+2*p+1)}")
    k("s_nop 1")
    k(f"v_mfma_f32_32x32x16_bf16 {v(OO,16)}, {v(V,4)}, {v(P[0],4)}, {v(OO,16)}")
    k(f"v_mfma_f32_32x32x16_bf16 {v(OO,16)}, {v(V+4,4)}, {v(P[0]+4,4)}, {v(OO,16)}")
    k(f"""s_add_u32 {s(sC)}, {s(sC)}, 1
    s_cmp_lt_u32 {s(sC)}, 64
    s_cbranch_scc1 L_attn_slow2
    s_nop 15""")
    get_l()
    k.label("L_attn_fin")
    k(f"v_rcp_f32 {v(vL)}, {v(vL)}")
    vA, vB, vC2 = vT[2], vT[3], vT[4]
    PP = P[0]
    k(f"""v_and_b32 {v(vA)}, 15, {v(vLane)}
    v_lshlrev_b32 {v(vA)}, 4, {v(vA)}
    v_bfe_u32 {v(vB)}, {v(vLane)}, 4, 1
    v_mul_u32_u24 {v(vB)}, 20480, {v(vB)}
    v_add_u32 {v(vA)}, {v(vA)}, {v(vB)}
    s_mul_i32 {s(sTMP)}, {s(sT)}, {2*20480}
    s_add_u32 {s(sTMP)}, {s(sTMP)}, {WS_O}
    s_mul_i32 {s(sTMP2)}, {s(sHEAD)}, 5
    v_lshrrev_b32 {v(vB)}, 5, {v(vLane)}
    v_add_u32 {v(vB)}, {s(sTMP2)}, {v(vB)}""")
    for i in range(12):
        k(f"v_mul_f32 {v(OO+i)}, {v(OO+i)}, {v(vL)}")
    for i in range(3):
        k(f"""v_add_u32 {v(vC2)}, {2*i}, {v(vB)}
        v_lshrrev_b32 {v(vT[5])}, 3, {v(vC2)}
        v_lshlrev_b32 {v(vT[5])}, 10, {v(vT[5])}
        v_and_b32 {v(vX)}, 3, {v(vC2)}
        v_lshl_add_u32 {v(vT[5])}, {v(vX)}, 8, {v(vT[5])}
        v_bfe_u32 {v(vX)}, {v(vC2)}, 2, 1
        v_lshl_add_u32 {v(vT[5])}, {v(vX)}, 3, {v(vT[5])}
        v_add_u32 {v(vT[5])}, {v(vT[5])}, {v(vA)}
        v_cvt_pk_bf16_f32 {v(PP+2*i)}, {v(OO+4*i)}, {v(OO+4*i+1)}
        v_cvt_pk_bf16_f32 {v(PP+2*i+1)}, {v(OO+4*i+2)}, {v(OO+4*i+3)}""")
        if i == 2:
            k(f"""v_cmp_gt_u32 vcc, 32, {v(vLane)}
            v_mov_b32 {v(vX)}, 0x7fffffff
            s_nop 0
            v_cndmask_b32 {v(vT[5])}, {v(vX)}, {v(vT[5])}, vcc""")
        k(f"buffer_store_dwordx2 {v(PP+2*i,2)}, {v(vT[5])}, {s(sWS,4)}, {s(sTMP)} offen{SC1}")
    k("s_waitcnt vmcnt(0)")
    k("s_barrier")
    lab = k.newlabel("osig")
    k(f"s_cmp_lg_u32 {s(sW)}, 0")
    k(f"s_cbranch_scc1 {lab}")
    k(f"s_add_u32 {s(sTMP)}, {s(sQB)}, {CNT_O}")
    signal(k, sTMP, 1)
    k.label(lab)
    return R.hi, XCH + 8 * 3072
    if opts.get("stamp"):
        k("s_waitcnt vmcnt(0)")
        stamp(k, opts, 3)
        stamp_flush(k, opts, 4, sWS, sW, vT[0], vT[1], phase=2)
    return ATTN_LDS
```

```python
from asm import *
from layout import *
import sync
from sync import sWS, sW, vLane

PX, PW, PWO, PBQ, PBK, PBV, PSH, PHK, PD, POUT, PDBG, PWS = [64 + 2 * i for i in range(12)]
SC1 = " sc1"

def mk_srd(k, sr, ptr, nbytes):
    k(f"""s_mov_b32 {s(sr)}, {s(ptr)}
    s_and_b32 {s(sr+1)}, {s(ptr+1)}, 0xffff
    s_mov_b32 {s(sr+2)}, {nbytes}
    s_mov_b32 {s(sr+3)}, 0x20000""")

def div10(k, vq, vrow, vpc, vtmp):
    k(f"""v_mul_u32_u24 {v(vrow)}, 6554, {v(vq)}
    v_lshrrev_b32 {v(vrow)}, 16, {v(vrow)}
    v_mul_u32_u24 {v(vtmp)}, 10, {v(vrow)}
    v_sub_u32 {v(vpc)}, {v(vq)}, {v(vtmp)}""")

def stamp(k, opts, idx):
    if not opts.get("stamp"): return
    k(f"s_memrealtime {s(40+2*idx,2)}")
    k("s_waitcnt lgkmcnt(0)") if opts.get("stampwait", 1) else None
def stamp_flush(k, opts, n):
    if not opts.get("stamp"): return
    k("s_waitcnt lgkmcnt(0)")
    k(f"""s_lshl_b32 s38, s2, 3
    s_add_u32 s38, s38, {s(sW)}
    s_lshl_b32 s38, s38, 6
    s_add_u32 s38, s38, {WS_STAMP}
    v_mov_b32 v2, 0""")
    for i in range(n):
        k(f"v_mov_b32 v3, {s(40+2*i)}")
        k(f"buffer_store_dword v3, v2, {s(sWS,4)}, s38 offen offset:{4*i}")
        k("s_nop 1")
    k("v_mov_b32 v3, 0x12345678")
    k(f"buffer_store_dword v3, v2, {s(sWS,4)}, s38 offen offset:60")
```

```python
from f_common import *
from sync import *

CONV0 = 69888
HPAD = 64
HC0 = 0
HC1 = 5248
UC0 = 10496
UC1 = UC0 + 5120 + 32
CHSZ = (UC1 + 5120 + 255) // 256 * 256
CONV_END = CONV0 + 3 * CHSZ
assert (HC1 - HC0) % 256 == 128 and (UC1 - UC0) % 256 == 32

def emit_conv(k, opts):
    R = Regs(4)
    sH = 12
    sCH, sT, sT2, sLB, sRHO, sN, sH0, sDV, sIDX, sEX = 16, 17, 18, 19, 20, 21, 22, 23, 24, 26
    vT = [R.alloc() for _ in range(8)]
    k(f"""s_cmp_lt_u32 s2, 128
    s_cselect_b32 {s(sN)}, 3, 2
    s_mul_i32 {s(sCH)}, s2, {s(sN)}
    s_cselect_b32 {s(sT)}, 0, 128
    s_add_u32 {s(sCH)}, {s(sCH)}, {s(sT)}
    s_add_u32 {s(sCH)}, {s(sCH)}, {s(sW)}
    s_cmp_ge_u32 {s(sW)}, {s(sN)}
    s_cbranch_scc1 L_conv_end""")
    mk_srd(k, sH, PHK, D * S * 2)
    k(f"""s_lshl_b32 {s(sT)}, {s(sCH)}, 12
    s_load_dword {s(sH0)}, {s(PHK,2)}, {s(sT)}
    s_lshr_b32 {s(sT2)}, {s(sCH)}, 1
    s_lshl_b32 {s(sT2)}, {s(sT2)}, 2
    s_load_dword {s(sDV)}, {s(PD,2)}, {s(sT2)}
    s_mul_i32 {s(sLB)}, {s(sW)}, {CHSZ}
    s_add_u32 {s(sLB)}, {s(sLB)}, {CONV0}""")
    vD, vD5 = R.alloc(), R.alloc()
    k(f"""v_lshlrev_b32 {v(vD)}, 4, {v(vLane)}
    v_cmp_gt_u32 vcc, 32, {v(vLane)}
    v_mov_b32 {v(vT[0])}, 0x7ffffff0
    s_nop 0
    v_cndmask_b32 {v(vD5)}, {v(vT[0])}, {v(vD)}, vcc""")
    for c in range(2):
        for i in range(5):
            k(f"s_add_u32 m0, {s(sLB)}, {(HC0, HC1)[c] + HPAD + i*1024}")
            k(f"s_add_u32 {s(sT2)}, {s(sT)}, {i*1024 + 4*c}")
            k(f"buffer_load_dwordx4 {v(vD)}, {s(sH,4)}, {s(sT2)} offen lds")
    k(f"""s_mul_i32 {s(sIDX)}, {s(sCH)}, 52429
    s_lshr_b32 {s(sIDX)}, {s(sIDX)}, 22
    s_add_u32 {s(sT)}, {s(sIDX)}, {CNT_UR}
    s_lshl_b32 {s(sT)}, {s(sT)}, 8
    v_mov_b32 {v(vT[0])}, {s(sT)}""")
    wait_counters(k, vT[0], 32)
    k(f"s_mul_i32 {s(sT)}, {s(sCH)}, {2*URROW}")
    k(f"s_add_u32 {s(sT)}, {s(sT)}, {WS_UR}")
    for c in range(2):
        for i in range(5):
            k(f"s_add_u32 m0, {s(sLB)}, {(UC0, UC1)[c] + i*1024}")
            k(f"s_add_u32 {s(sT2)}, {s(sT)}, {i*1024 + URROW*c}")
            k(f"buffer_load_dwordx4 {v(vD if i < 4 else vD5)}, {s(sWS,4)}, {s(sT2)} offen{SC1} lds")
    aH, aU = R.alloc(), R.alloc()
    k(f"""v_and_b32 {v(vT[0])}, 1, {v(vLane)}
    v_mul_u32_u24 {v(aH)}, {HC1 - HC0}, {v(vT[0])}
    v_bfe_u32 {v(vT[1])}, {v(vLane)}, 1, 3
    v_lshl_add_u32 {v(aH)}, {v(vT[1])}, 3, {v(aH)}
    v_lshrrev_b32 {v(vT[2])}, 4, {v(vLane)}
    v_lshl_add_u32 {v(aH)}, {v(vT[2])}, 4, {v(aH)}
    s_add_u32 {s(sT)}, {s(sLB)}, {HC0 + HPAD - 64}
    v_add_u32 {v(aH)}, {s(sT)}, {v(aH)}
    v_mul_u32_u24 {v(aU)}, {UC1 - UC0}, {v(vT[0])}
    v_lshl_add_u32 {v(aU)}, {v(vT[2])}, 4, {v(aU)}
    v_lshlrev_b32 {v(vT[1])}, 6, {v(vT[1])}
    v_sub_u32 {v(aU)}, {v(aU)}, {v(vT[1])}
    s_add_u32 {s(sT)}, {s(sLB)}, {UC0 + 2048*2 - 7*512 - 64}
    v_add_u32 {v(aU)}, {s(sT)}, {v(aU)}""")
    ACC = R.alloc(32, 4)
    HF = [R.alloc(32, 4), R.alloc(32, 4)]
    UF = [R.alloc(32, 4), R.alloc(32, 4)]
    for i in range(32):
        k(f"v_mov_b32 {v(ACC+i)}, 0")
    tz = HF[0]
    for i in range(4):
        k(f"v_mov_b32 {v(tz+i)}, 0")
    k("s_waitcnt lgkmcnt(0)")
    k(f"""s_and_b32 {s(sT)}, {s(sCH)}, 1
    s_lshl_b32 {s(sT)}, {s(sT)}, 4
    s_lshr_b32 {s(sDV)}, {s(sDV)}, {s(sT)}
    s_lshl_b32 {s(sDV)}, {s(sDV)}, 16
    s_lshl_b32 {s(sT)}, {s(sH0)}, 16
    v_mov_b32 {v(vT[3])}, {s(sT)}
    v_add_f32 {v(vT[3])}, {s(sDV)}, {v(vT[3])}
    v_cvt_pk_bf16_f32 {v(vT[3])}, {v(vT[3])}, {v(vT[3])}
    v_and_b32 {v(vT[3])}, 0xffff, {v(vT[3])}
    s_and_b32 {s(sT)}, {s(sH0)}, 0xffff0000
    v_or_b32 {v(vT[3])}, {s(sT)}, {v(vT[3])}
    v_lshlrev_b32 {v(vT[4])}, 4, {v(vLane)}
    v_add_u32 {v(vT[4])}, {s(sLB)}, {v(vT[4])}
    v_mov_b32 {v(vT[5])}, {s(sLB)}
    s_waitcnt vmcnt(0)
    s_mov_b64 {s(sEX,2)}, exec
    s_mov_b64 exec, 0xf""")
    k(f"ds_write_b128 {v(vT[4])}, {v(tz,4)} offset:{HC0}")
    k(f"ds_write_b128 {v(vT[4])}, {v(tz,4)} offset:{HC1}")
    k("s_mov_b64 exec, 0x7fffffff")
    k(f"ds_write_b128 {v(vT[4])}, {v(tz,4)} offset:{UC0 + 4112}")
    k(f"ds_write_b128 {v(vT[4])}, {v(tz,4)} offset:{UC1 + 4112}")
    k("s_mov_b64 exec, 1")
    k("s_waitcnt lgkmcnt(0)")
    k(f"ds_write_b32 {v(vT[5])}, {v(vT[3])} offset:{HC0 + HPAD}")
    k(f"ds_write_b32 {v(vT[5])}, {v(vT[3])} offset:{HC1 + HPAD - 4}")
    k(f"s_mov_b64 exec, {s(sEX,2)}")
    k("s_waitcnt lgkmcnt(0)")
    def rdH(f, ip):
        for r in range(2):
            k(f"ds_read_b64 {v(HF[f]+4*ip+2*r,2)}, {v(aH)} offset:{ip*512 + r*8}")
    def rdU(f, ii):
        k(f"ds_read_b128 {v(UF[f]+4*ii,4)}, {v(aU)} offset:{(7-ii)*512}")
    def mf(A, f, ip, ii):
        k(f"v_mfma_f32_16x16x32_bf16 {v(ACC+4*A,4)}, {v(HF[f]+4*ip,4)}, {v(UF[f]+4*ii,4)}, {v(ACC+4*A,4)}")
    def adv():
        k(f"v_add_u32 {v(aH)}, 64, {v(aH)}")
        k(f"v_add_u32 {v(aU)}, 64, {v(aU)}")
    rdH(1, 0)
    for ii in range(8): rdU(1, ii)
    adv()
    k("s_waitcnt lgkmcnt(0)")
    for j in range(8):
        rdH(0, j); rdU(0, j)
        if j == 3: k("s_waitcnt lgkmcnt(0)")
    adv()
    for A in range(8): mf(A, 1, 0, A)
    k("s_waitcnt lgkmcnt(0)")
    k(f"s_mov_b32 {s(sRHO)}, 0")
    k.label("L_conv_loop")
    for f in range(2):
        rds = []
        for j in range(8):
            rds.append(("H", j, 0)); rds.append(("H", j, 1)); rds.append(("U", j, 0))
        pairs = [(A, ip) for ip in range(8) for A in range(ip, 8)]
        ri = 0
        for n, (A, ip) in enumerate(pairs):
            mf(A, f, ip, A - ip)
            if ri < len(rds) and n >= 2:
                t, j, r = rds[ri]; ri += 1
                if t == "H":
                    k(f"ds_read_b64 {v(HF[f^1]+4*j+2*r,2)}, {v(aH)} offset:{j*512 + r*8}")
                else:
                    rdU(f ^ 1, j)
        assert ri == len(rds)
        adv()
        k("s_waitcnt lgkmcnt(0)")
    k(f"""s_add_u32 {s(sRHO)}, {s(sRHO)}, 1
    s_cmp_lt_u32 {s(sRHO)}, 4
    s_cbranch_scc1 L_conv_loop""")
    selA, selB, selX, vZ = vT[0], vT[1], vT[2], vT[3]
    k(f"""v_and_b32 {v(vT[4])}, 1, {v(vLane)}
    v_cmp_eq_u32 vcc, 1, {v(vT[4])}
    v_mov_b32 {v(vT[5])}, 0x03020100
    v_mov_b32 {v(vT[6])}, 0x07060504
    v_cndmask_b32 {v(selX)}, {v(vT[6])}, {v(vT[5])}, vcc
    v_mov_b32 {v(vT[5])}, 0x01000504
    v_mov_b32 {v(vT[6])}, 0x05040100
    v_cndmask_b32 {v(selA)}, {v(vT[5])}, {v(vT[6])}, vcc
    v_mov_b32 {v(vT[5])}, 0x03020706
    v_mov_b32 {v(vT[6])}, 0x07060302
    v_cndmask_b32 {v(selB)}, {v(vT[5])}, {v(vT[6])}, vcc
    v_bfe_u32 {v(vT[5])}, {v(vLane)}, 1, 3
    v_lshlrev_b32 {v(vZ)}, 6, {v(vT[5])}
    v_lshrrev_b32 {v(vT[5])}, 4, {v(vLane)}
    v_lshl_add_u32 {v(vZ)}, {v(vT[5])}, 4, {v(vZ)}
    v_lshl_add_u32 {v(vZ)}, {v(vT[4])}, 3, {v(vZ)}
    s_lshl_b32 {s(sT)}, {s(sCH)}, 12
    s_add_u32 {s(sT)}, {s(sT)}, {WS_Z}
    s_nop 3""")
    T0 = HF[0]
    for A in range(8):
        a, b, ra, rb, x, y = [T0 + 8*(A % 4) + i for i in range(6)]
        o = UF[0] + 2*A
        k(f"""v_cvt_pk_bf16_f32 {v(a)}, {v(ACC+4*A)}, {v(ACC+4*A+1)}
        v_cvt_pk_bf16_f32 {v(b)}, {v(ACC+4*A+2)}, {v(ACC+4*A+3)}
        s_nop 1
        v_mov_b32_dpp {v(ra)}, {v(a)} quad_perm:[1,0,3,2] row_mask:0xf bank_mask:0xf
        v_mov_b32_dpp {v(rb)}, {v(b)} quad_perm:[1,0,3,2] row_mask:0xf bank_mask:0xf
        v_perm_b32 {v(x)}, {v(a)}, {v(b)}, {v(selX)}
        v_perm_b32 {v(y)}, {v(ra)}, {v(rb)}, {v(selX)}
        v_perm_b32 {v(o)}, {v(x)}, {v(y)}, {v(selA)}
        v_perm_b32 {v(o+1)}, {v(x)}, {v(y)}, {v(selB)}""")
        k(f"buffer_store_dwordx2 {v(o,2)}, {v(vZ)}, {s(sWS,4)}, {s(sT)} offen offset:{A*512}{SC1}")
    k("s_waitcnt vmcnt(0)")
    k(f"s_add_u32 {s(sIDX)}, {s(sIDX)}, {CNT_Z}")
    signal(k, sIDX, 1)
    k.label("L_conv_end")
    return R.hi, CONV_END
```

```python
from f_common import *
from sync import *

XS = 16384
SLOTB = 32768
NSL = 4
KIMG = NSL * SLOTB
VIMG = KIMG + 12288
B1SCR = VIMG + 12288
P1_LDS = B1SCR + 2048
NBAR = 10

def emit_p1(k, opts):
    R = Regs(4)
    sX, sWQ, sK, sV, sSH = 12, 16, 20, 24, 28
    sCT, sJ, sT, sT2, sC, sSC, sM0, sLW, sOB, sTB, sCB, sTAU, sIDX = 32, 33, 34, 35, 36, 37, 56, 57, 58, 59, 60, 61, 62
    vT = [R.alloc() for _ in range(8)]
    k(f"""s_bfe_u32 {s(sJ)}, s2, 0x20001
    s_lshl_b32 {s(sJ)}, {s(sJ)}, 2
    s_bfe_u32 {s(sT)}, s2, 0x20003
    s_add_u32 {s(sJ)}, {s(sJ)}, {s(sT)}
    s_and_b32 {s(sCT)}, s2, 1
    s_lshl_b32 {s(sCT)}, {s(sCT)}, 3
    s_lshr_b32 {s(sT)}, s2, 5
    s_add_u32 {s(sCT)}, {s(sCT)}, {s(sT)}""")
    k(f"s_cmp_ge_u32 {s(sW)}, 6")
    k("s_cbranch_scc1 L_p1_b1")
    k(f"s_cmp_ge_u32 {s(sCT)}, 15")
    k("s_cbranch_scc1 L_p1_idle")
    k(f"s_cmp_ge_u32 {s(sW)}, 4")
    k("s_cbranch_scc1 L_p1_loader")
    aX = [R.alloc(), R.alloc()]
    aW = [R.alloc(), R.alloc()]
    F = [dict(X=[R.alloc(4, 4), R.alloc(4, 4)], W=[R.alloc(4, 4), R.alloc(4, 4)]) for _ in range(2)]
    ACC = [[R.alloc(16, 4) for tt in range(2)] for nt in range(2)]
    k(f"""s_and_b32 {s(sT)}, {s(sW)}, 1
    s_lshl_b32 {s(sT)}, {s(sT)}, 13
    v_bfe_u32 {v(vT[0])}, {v(vLane)}, 2, 3
    v_lshlrev_b32 {v(vT[1])}, 10, {v(vT[0])}
    v_add_u32 {v(vT[1])}, {s(sT)}, {v(vT[1])}
    v_and_b32 {v(vT[0])}, 3, {v(vT[0])}
    v_and_b32 {v(vT[2])}, 3, {v(vLane)}
    v_xor_b32 {v(vT[0])}, {v(vT[0])}, {v(vT[2])}
    v_lshl_add_u32 {v(vT[1])}, {v(vT[0])}, 6, {v(vT[1])}
    v_lshrrev_b32 {v(vT[3])}, 5, {v(vLane)}
    v_xor_b32 {v(vT[3])}, {v(vT[3])}, {v(vT[2])}
    v_lshl_add_u32 {v(aX[0])}, {v(vT[3])}, 4, {v(vT[1])}
    v_xor_b32 {v(aX[1])}, 32, {v(aX[0])}""")
    k(f"""v_bfe_u32 {v(vT[0])}, {v(vLane)}, 2, 2
    v_lshrrev_b32 {v(vT[1])}, 5, {v(vLane)}
    v_lshlrev_b32 {v(vT[1])}, 3, {v(vT[1])}
    v_add_u32 {v(vT[1])}, {v(vT[1])}, {v(vT[0])}
    v_lshlrev_b32 {v(vT[1])}, 8, {v(vT[1])}
    v_add_u32 {v(vT[1])}, {XS}, {v(vT[1])}
    v_lshlrev_b32 {v(vT[0])}, 6, {v(vT[0])}
    v_bfe_u32 {v(vT[2])}, {v(vLane)}, 4, 1
    v_lshlrev_b32 {v(vT[2])}, 2, {v(vT[2])}
    v_and_b32 {v(vT[3])}, 3, {v(vLane)}
    v_add_u32 {v(vT[2])}, {v(vT[2])}, {v(vT[3])}
    s_lshr_b32 {s(sT)}, {s(sW)}, 1
    s_lshl_b32 {s(sT)}, {s(sT)}, 4
    v_add_u32 {v(vT[2])}, {s(sT)}, {v(vT[2])}""")
    for nt in range(2):
        k(f"""v_add_u32 {v(vT[3])}, {8*nt}, {v(vT[2])}
        v_lshlrev_b32 {v(vT[3])}, 3, {v(vT[3])}
        v_xor_b32 {v(vT[3])}, {v(vT[3])}, {v(vT[0])}
        v_add_u32 {v(aW[nt])}, {v(vT[3])}, {v(vT[1])}""")
    for nt in range(2):
        for tt in range(2):
            for i in range(16):
                k(f"v_mov_b32 {v(ACC[nt][tt]+i)}, 0")
    def reads(f, ks, par):
        off = par * SLOTB
        for tt in range(2):
            k(f"ds_read_b128 {v(F[f]['X'][tt],4)}, {v(aX[ks & 1])} offset:{off + tt*512 + (ks >> 1)*256}")
        for nt in range(2):
            for rd in range(2):
                k(f"ds_read_b64_tr_b16 {v(F[f]['W'][nt]+2*rd,2)}, {v(aW[nt])} offset:{off + (16*ks+4*rd)*256}")
    def mfmas(f):
        for nt in range(2):
            for tt in range(2):
                k(f"v_mfma_f32_32x32x16_bf16 {v(ACC[nt][tt],16)}, {v(F[f]['W'][nt],4)}, {v(F[f]['X'][tt],4)}, {v(ACC[nt][tt],16)}")
    k("s_barrier")
    stamp(k, opts, 1)
    reads(0, 0, 0)
    k(f"s_mov_b32 {s(sC)}, 0")
    k.label("L_p1_loop")
    for par in range(2):
        for ks in range(4):
            f = ks & 1
            if ks < 3:
                reads(f ^ 1, ks + 1, par)
                k("s_waitcnt lgkmcnt(6)")
                mfmas(f)
            else:
                k("s_waitcnt lgkmcnt(0)")
                if par == 1:
                    for a in aX + aW:
                        k(f"v_xor_b32 {v(a)}, {2*SLOTB}, {v(a)}")
                    lab = k.newlabel("p1last")
                    k(f"s_cmp_eq_u32 {s(sC)}, 4")
                    k(f"s_cbranch_scc1 {lab}")
                    k("s_barrier")
                    reads(0, 0, 0)
                    k.label(lab)
                else:
                    k("s_barrier")
                    reads(0, 0, 1)
                mfmas(f)
    k(f"""s_add_u32 {s(sC)}, {s(sC)}, 1
    s_cmp_lt_u32 {s(sC)}, 5
    s_cbranch_scc1 L_p1_loop""")
    stamp(k, opts, 2)
    o16 = aX[0]
    k(f"""s_lshl_b32 {s(sOB)}, {s(sCT)}, 5
    s_lshr_b32 {s(sT)}, {s(sW)}, 1
    s_lshl_b32 {s(sT)}, {s(sT)}, 4
    s_add_u32 {s(sOB)}, {s(sOB)}, {s(sT)}
    s_lshl_b32 {s(sOB)}, {s(sOB)}, 14
    s_lshl_b32 {s(sT)}, {s(sJ)}, 10
    s_add_u32 {s(sOB)}, {s(sOB)}, {s(sT)}
    s_and_b32 {s(sT)}, {s(sW)}, 1
    s_lshl_b32 {s(sT)}, {s(sT)}, 9
    s_add_u32 {s(sOB)}, {s(sOB)}, {s(sT)}
    v_and_b32 {v(vT[0])}, 31, {v(vLane)}
    v_lshrrev_b32 {v(vT[1])}, 5, {v(vLane)}
    v_lshlrev_b32 {v(vT[1])}, 14, {v(vT[1])}
    v_lshl_add_u32 {v(o16)}, {v(vT[0])}, 4, {v(vT[1])}
    s_cmp_lt_u32 {s(sCT)}, 5
    s_cbranch_scc0 L_p1_noscale
    s_mov_b32 {s(sSC)}, {f32bits(QSCALE):#x}
    s_nop 7""")
    for nt in range(2):
        for tt in range(2):
            for i in range(16):
                k(f"v_mul_f32 {v(ACC[nt][tt]+i)}, {s(sSC)}, {v(ACC[nt][tt]+i)}")
    k.label("L_p1_noscale")
    k("s_nop 7")
    PK = F[0]['X'][0]
    for nt in range(2):
        for i in range(4):
            p = PK + (nt*4 + i) * 4
            for tt in range(2):
                A = ACC[nt][tt]
                k(f"v_cvt_pk_bf16_f32 {v(p+2*tt)}, {v(A+4*i)}, {v(A+4*i+1)}")
                k(f"v_cvt_pk_bf16_f32 {v(p+2*tt+1)}, {v(A+4*i+2)}, {v(A+4*i+3)}")
            k(f"s_add_u32 {s(sT)}, {s(sOB)}, {(8*nt+2*i)*GRP}")
            k(f"buffer_store_dwordx4 {v(p,4)}, {v(o16)}, {s(sWS,4)}, {s(sT)} offen{SC1}")
    k("s_branch L_p1_end")
    k.label("L_p1_loader")
    mk_srd(k, sX, PX, S * D * 2); mk_srd(k, sWQ, PW, D * 3 * D * 2)
    vXo = [F[0]['X'][0], F[0]['X'][0] + 1]; vWo = [F[0]['X'][0] + 2, F[0]['X'][0] + 3]
    k(f"s_sub_u32 {s(sLW)}, {s(sW)}, 4")
    for e in range(2):
        k(f"""s_lshl_b32 {s(sT)}, {s(sLW)}, 1
        s_add_u32 {s(sT)}, {s(sT)}, {e}
        v_bfe_u32 {v(vT[0])}, {v(vLane)}, 2, 2
        v_xor_b32 {v(vT[0])}, {s(sT)}, {v(vT[0])}
        v_and_b32 {v(vT[1])}, 3, {v(vLane)}
        v_xor_b32 {v(vT[1])}, {v(vT[1])}, {v(vT[0])}
        v_bfe_u32 {v(vT[2])}, {v(vLane)}, 4, 1
        v_lshl_add_u32 {v(vT[1])}, {v(vT[2])}, 2, {v(vT[1])}
        v_lshrrev_b32 {v(vT[2])}, 5, {v(vLane)}
        v_lshl_add_u32 {v(vT[2])}, {v(vT[0])}, 1, {v(vT[2])}
        s_lshl_b32 {s(sT2)}, {s(sJ)}, 7
        s_lshl_b32 {s(sC)}, {s(sT)}, 3
        s_add_u32 {s(sT2)}, {s(sT2)}, {s(sC)}
        v_add_u32 {v(vT[2])}, {s(sT2)}, {v(vT[2])}
        v_mul_u32_u24 {v(vT[2])}, 1280, {v(vT[2])}
        v_lshl_add_u32 {v(vXo[e])}, {v(vT[1])}, 4, {v(vT[2])}""")
        k(f"""v_lshrrev_b32 {v(vT[0])}, 4, {v(vLane)}
        v_and_b32 {v(vT[1])}, 15, {v(vLane)}
        v_lshlrev_b32 {v(vT[2])}, 2, {v(vT[0])}
        v_xor_b32 {v(vT[1])}, {v(vT[1])}, {v(vT[2])}
        v_lshlrev_b32 {v(vWo[e])}, 4, {v(vT[1])}
        s_lshl_b32 {s(sT2)}, {s(sCT)}, 8
        v_add_u32 {v(vWo[e])}, {s(sT2)}, {v(vWo[e])}
        s_lshl_b32 {s(sT2)}, {s(sT)}, 2
        v_add_u32 {v(vT[0])}, {s(sT2)}, {v(vT[0])}
        v_mul_u32_u24 {v(vT[0])}, 3840, {v(vT[0])}
        v_add_u32 {v(vWo[e])}, {v(vWo[e])}, {v(vT[0])}""")
    k(f"s_lshl_b32 {s(sM0)}, {s(sLW)}, 11")
    def issue(c):
        sl = (c % NSL) * SLOTB
        for i in range(4):
            for e in range(2):
                k(f"s_add_u32 m0, {s(sM0)}, {sl + i*4096 + e*1024}")
                k(f"s_mov_b32 {s(sT)}, {c*128 + i*40960}")
                k(f"buffer_load_dwordx4 {v(vXo[e])}, {s(sX,4)}, {s(sT)} offen lds")
                k(f"s_add_u32 m0, {s(sM0)}, {sl + XS + i*4096 + e*1024}")
                k(f"s_mov_b32 {s(sT)}, {(c*64 + i*16)*3840}")
                k(f"buffer_load_dwordx4 {v(vWo[e])}, {s(sWQ,4)}, {s(sT)} offen lds")
    issue(0); issue(1)
    k("s_waitcnt vmcnt(16)")
    k("s_barrier")
    issue(2); issue(3)
    for c in range(9):
        outstanding = min(c + 3, 9) - (c + 1)
        k(f"s_waitcnt vmcnt({16*outstanding})")
        k("s_barrier")
        if c + 4 <= 9:
            issue(c + 4)
    k("s_branch L_p1_end")
    k.label("L_p1_idle")
    for i in range(NBAR):
        k("s_barrier")
    k("s_branch L_p1_end")
    k.label("L_p1_b1")
    mk_srd(k, sK, PBK, S * D * 2); mk_srd(k, sV, PBV, S * D * 2); mk_srd(k, sSH, PSH, D * 4 * 2)
    k(f"""s_sub_u32 {s(sLW)}, {s(sW)}, 6
    s_and_b32 {s(sTB)}, s2, 7
    s_lshl_b32 {s(sTB)}, {s(sTB)}, 2
    s_bfe_u32 {s(sT)}, s2, 0x20003
    s_add_u32 {s(sTB)}, {s(sTB)}, {s(sT)}
    s_lshr_b32 {s(sCB)}, s2, 5""")
    RB = Regs(12)
    TAP = RB.alloc(12, 4)
    vA = [RB.alloc() for _ in range(6)]
    KQ = RB.alloc(6, 2); VQ = RB.alloc(6, 2)
    kk = RB.alloc(12); vv = RB.alloc(9); w = RB.alloc(4); u = RB.alloc(9)
    o = RB.alloc(8, 4); o2 = RB.alloc(8, 4)
    aT, aS, aL, aLr = RB.alloc(), RB.alloc(), RB.alloc(), RB.alloc()
    k(f"""s_lshl_b32 {s(sT)}, {s(sTB)}, 6
    s_sub_u32 {s(sT)}, {s(sT)}, 10
    s_mul_i32 {s(sT)}, {s(sT)}, 1280
    s_mul_i32 {s(sT2)}, {s(sCB)}, 160
    s_add_u32 {s(sT)}, {s(sT)}, {s(sT2)}
    s_lshl_b32 {s(sT2)}, {s(sLW)}, 6""")
    for i in range(6):
        k(f"v_add_u32 {v(vT[0])}, {s(sT2)}, {v(vLane)}")
        if i: k(f"v_add_u32 {v(vT[0])}, {128*i}, {v(vT[0])}")
        div10(k, vT[0], vT[1], vT[2], vT[3])
        k(f"""v_mul_u32_u24 {v(vT[1])}, 1280, {v(vT[1])}
        v_lshl_add_u32 {v(vT[1])}, {v(vT[2])}, 4, {v(vT[1])}
        v_add_u32 {v(vA[i])}, {s(sT)}, {v(vT[1])}""")
    def task_lane(i, cg, nl, tag, lanesrc):
        k(f"""s_mul_i32 {s(sTAU)}, {s(sLW)}, 6
        s_add_u32 {s(sTAU)}, {s(sTAU)}, {i}
        s_cmp_lt_u32 {s(sTAU)}, 10
        s_cbranch_scc0 L_b1t_{i}{tag}
        s_lshr_b32 {s(sT)}, {s(sTAU)}, 1
        v_mov_b32 {v(cg)}, {s(sT)}
        s_and_b32 {s(sT)}, {s(sTAU)}, 1
        s_lshl_b32 {s(sT)}, {s(sT)}, 2
        v_add_u32 {v(nl)}, {s(sT)}, {v(lanesrc)}
        s_branch L_b1u_{i}{tag}""")
        k.label(f"L_b1t_{i}{tag}")
        k(f"""s_sub_u32 {s(sT)}, {s(sTAU)}, 10
        s_lshl_b32 {s(sT)}, {s(sT)}, 2
        v_add_u32 {v(cg)}, {s(sT)}, {v(lanesrc)}
        v_mov_b32 {v(nl)}, 8""")
        k.label(f"L_b1u_{i}{tag}")
    k("s_barrier")
    k(f"s_lshl_b32 {s(sM0)}, {s(sLW)}, 10")
    for i in range(6):
        k(f"s_add_u32 m0, {s(sM0)}, {KIMG + i*2048}")
        k("s_nop 0")
        k(f"buffer_load_dwordx4 {v(vA[i])}, {s(sK,4)}, 0 offen lds")
        k(f"s_add_u32 m0, {s(sM0)}, {VIMG + i*2048}")
        k("s_nop 0")
        k(f"buffer_load_dwordx4 {v(vA[i])}, {s(sV,4)}, 0 offen lds")
    gq = vT[6]
    k(f"v_lshrrev_b32 {v(gq)}, 4, {v(vLane)}")
    for i in range(6):
        task_lane(i, vT[4], vT[5], "a", gq)
        k(f"""v_and_b32 {v(vT[0])}, 15, {v(vLane)}
        v_lshl_add_u32 {v(vT[0])}, {v(vT[4])}, 4, {v(vT[0])}
        s_mul_i32 {s(sT)}, {s(sCB)}, 80
        v_add_u32 {v(vT[0])}, {s(sT)}, {v(vT[0])}
        v_lshlrev_b32 {v(vT[0])}, 3, {v(vT[0])}
        buffer_load_dwordx2 {v(TAP+2*i,2)}, {v(vT[0])}, {s(sSH,4)}, 0 offen""")
    q4 = vT[7]
    k(f"""s_lshl_b32 {s(sT)}, {s(sLW)}, 10
    s_add_u32 {s(sT)}, {s(sT)}, {B1SCR}
    v_and_b32 {v(vT[0])}, 15, {v(vLane)}
    v_lshl_add_u32 {v(vT[0])}, {v(vT[0])}, 2, {v(gq)}
    v_lshlrev_b32 {v(aL)}, 4, {v(vT[0])}
    v_add_u32 {v(aL)}, {s(sT)}, {v(aL)}
    v_lshlrev_b32 {v(aLr)}, 4, {v(vLane)}
    v_add_u32 {v(aLr)}, {s(sT)}, {v(aLr)}
    v_and_b32 {v(q4)}, 3, {v(vLane)}""")
    k("s_barrier")
    k("s_waitcnt vmcnt(0)")
    k("s_barrier")
    vI = RB.alloc()
    k(f"v_mov_b32 {v(vT[0])}, 0")
    k(f"global_load_dword {v(vI)}, {v(vT[0])}, {s(sDBG,2)} offset:128 sc1")
    for i in range(6):
        cg, nl = vT[4], vT[5]
        task_lane(i, cg, nl, "b", gq)
        k(f"""v_bfe_u32 {v(vT[0])}, {v(vLane)}, 2, 2
        v_lshl_add_u32 {v(vT[0])}, {v(nl)}, 3, {v(vT[0])}
        v_mul_u32_u24 {v(aT)}, 160, {v(vT[0])}
        v_min_u32 {v(vT[1])}, 4, {v(cg)}
        v_lshl_add_u32 {v(aT)}, {v(vT[1])}, 5, {v(aT)}
        v_and_b32 {v(vT[0])}, 3, {v(vLane)}
        v_lshl_add_u32 {v(aT)}, {v(vT[0])}, 3, {v(aT)}
        v_add_u32 {v(aT)}, {KIMG}, {v(aT)}""")
        for qd in range(3):
            k(f"ds_read_b64_tr_b16 {v(KQ+2*qd,2)}, {v(aT)} offset:{qd*640}")
            k(f"ds_read_b64_tr_b16 {v(VQ+2*qd,2)}, {v(aT)} offset:{12288 + qd*640}")
        task_lane(i, cg, nl, "c", q4)
        k(f"""v_lshrrev_b32 {v(vT[0])}, 2, {v(vLane)}
        v_lshl_add_u32 {v(vT[0])}, {v(cg)}, 4, {v(vT[0])}
        s_mul_i32 {s(sT)}, {s(sCB)}, 80
        v_add_u32 {v(vT[0])}, {s(sT)}, {v(vT[0])}
        v_mul_u32_u24 {v(aS)}, {2*URROW}, {v(vT[0])}
        v_lshlrev_b32 {v(vT[1])}, 4, {v(nl)}
        v_sub_u32 {v(aS)}, {v(aS)}, {v(vT[1])}
        s_lshl_b32 {s(sT)}, {s(sTB)}, 7
        s_sub_u32 {s(sT)}, {WS_UR + 4096}, {s(sT)}
        v_add_u32 {v(aS)}, {s(sT)}, {v(aS)}
        v_cmp_gt_u32 vcc, 5, {v(cg)}
        v_mov_b32 {v(vT[1])}, 0x7ffffff0""")
        tp = TAP + 2*i
        k(f"""v_lshlrev_b32 {v(w)}, 16, {v(tp)}
        v_cndmask_b32 {v(aS)}, {v(vT[1])}, {v(aS)}, vcc
        v_and_b32 {v(w+1)}, 0xffff0000, {v(tp)}
        v_lshlrev_b32 {v(w+2)}, 16, {v(tp+1)}
        v_and_b32 {v(w+3)}, 0xffff0000, {v(tp+1)}
        s_waitcnt lgkmcnt(0)""")
        for d in range(6):
            k(f"v_lshlrev_b32 {v(kk+2*d)}, 16, {v(KQ+d)}")
            k(f"v_and_b32 {v(kk+2*d+1)}, 0xffff0000, {v(KQ+d)}")
        for j in range(3, 12):
            src = VQ + j // 2
            if j & 1: k(f"v_and_b32 {v(vv+j-3)}, 0xffff0000, {v(src)}")
            else: k(f"v_lshlrev_b32 {v(vv+j-3)}, 16, {v(src)}")
        for j in range(3, 12):
            k(f"v_mul_f32 {v(u+j-3)}, {v(w+3)}, {v(kk+j-3)}")
            k(f"v_fmac_f32 {v(u+j-3)}, {v(w+2)}, {v(kk+j-2)}")
            k(f"v_fmac_f32 {v(u+j-3)}, {v(w+1)}, {v(kk+j-1)}")
            k(f"v_fmac_f32 {v(u+j-3)}, {v(w)}, {v(kk+j)}")
            k(f"v_mul_f32 {v(u+j-3)}, {v(u+j-3)}, {v(vv+j-3)}")
        U = lambda j: u + j - 3
        for d in range(4):
            k(f"v_cvt_pk_bf16_f32 {v(o+d)}, {v(U(10-2*d))}, {v(U(9-2*d))}")
        for d in range(4):
            k(f"v_cvt_pk_bf16_f32 {v(o+4+d)}, {v(U(11-2*d))}, {v(U(10-2*d))}")
        for c in range(2):
            k(f"ds_write_b128 {v(aL)}, {v(o+4*c,4)}")
            k("s_waitcnt lgkmcnt(0)")
            k(f"ds_read_b128 {v(o2+4*c,4)}, {v(aLr)}")
            k("s_waitcnt lgkmcnt(0)")
        k(f"s_mov_b32 {s(sT)}, {URROW}")
        k(f"buffer_store_dwordx4 {v(o2,4)}, {v(aS)}, {s(sWS,4)}, 0 offen{SC1}")
        k(f"buffer_store_dwordx4 {v(o2+4,4)}, {v(aS)}, {s(sWS,4)}, {s(sT)} offen{SC1}")
        if i == 5:
            k("s_waitcnt vmcnt(0)")
            lab = k.newlabel("initok")
            k(f"v_readfirstlane_b32 {s(sT)}, {v(vI)}")
            k(f"s_cmp_lg_u32 {s(sT)}, 0")
            k(f"s_cbranch_scc1 {lab}")
            wait_init(k)
            k.label(lab)
        k("s_barrier")
    k("s_barrier")
    lab = k.newlabel("b1sig")
    k(f"s_cmp_eq_u32 {s(sW)}, 6")
    k(f"s_cbranch_scc0 {lab}")
    k(f"s_add_u32 {s(sIDX)}, {s(sCB)}, {CNT_UR}")
    signal(k, sIDX, 1)
    k.label(lab)
    k.label("L_p1_end")
    k("s_waitcnt vmcnt(0) lgkmcnt(0)")
    k("s_barrier")
    lab = k.newlabel("p1sig")
    k(f"s_cmp_lg_u32 {s(sW)}, 0")
    k(f"s_cbranch_scc1 {lab}")
    k(f"s_cmp_ge_u32 {s(sCT)}, 15")
    k(f"s_cbranch_scc1 {lab}")
    signal(k, sCT, 1)
    k.label(lab)
    return max(R.hi, RB.hi), P1_LDS
```

```python
from f_common import *
from sync import *

WIMG = 20 * 5120
ZI = WIMG
QI = ZI + 10240
P3_LDS = QI + 10240

def emit_p3(k, opts):
    R = Regs(4)
    sWO, sOUT, sQ = 12, 16, 20
    sTB, sCB, sT, sT2, sLW, sB, sL, sN = 24, 25, 26, 27, 28, 29, 30, 31
    vT = [R.alloc() for _ in range(8)]
    k(f"""s_and_b32 {s(sTB)}, s2, 7
    s_lshl_b32 {s(sTB)}, {s(sTB)}, 2
    s_bfe_u32 {s(sT)}, s2, 0x20003
    s_add_u32 {s(sTB)}, {s(sTB)}, {s(sT)}
    s_lshr_b32 {s(sCB)}, s2, 5""")
    mk_srd(k, sOUT, POUT, S * 2 * D * 2)
    k(f"s_cmp_ge_u32 {s(sW)}, 4")
    k("s_cbranch_scc1 L_p3_loader")
    OF = R.alloc(80, 4)
    WF = [R.alloc(20, 4), R.alloc(20, 4)]
    ACC = R.alloc(20, 4)
    aW0, aW1, vO = R.alloc(), R.alloc(), R.alloc()
    k(f"""v_lshrrev_b32 {v(vT[0])}, 4, {v(vLane)}
    v_lshlrev_b32 {v(vT[0])}, 2, {v(vT[0])}
    v_bfe_u32 {v(vT[1])}, {v(vLane)}, 2, 2
    v_add_u32 {v(vT[0])}, {v(vT[0])}, {v(vT[1])}
    v_mul_u32_u24 {v(aW0)}, 160, {v(vT[0])}
    v_and_b32 {v(vT[1])}, 3, {v(vLane)}
    v_lshl_add_u32 {v(aW0)}, {v(vT[1])}, 3, {v(aW0)}
    v_add_u32 {v(aW1)}, {10*5120}, {v(aW0)}
    v_lshlrev_b32 {v(vO)}, 4, {v(vLane)}""")
    for i in range(20):
        k(f"v_mov_b32 {v(ACC+i)}, 0")
    k(f"""s_lshr_b32 {s(sT)}, {s(sTB)}, 2
    s_add_u32 {s(sT)}, {s(sT)}, {CNT_O}
    s_lshl_b32 {s(sT)}, {s(sT)}, 8
    v_mov_b32 {v(vT[0])}, {s(sT)}""")
    wait_counters(k, vT[0], 32)
    stamp(k, opts, 6)
    k(f"""s_lshl_b32 {s(sT)}, {s(sTB)}, 2
    s_add_u32 {s(sT)}, {s(sT)}, {s(sW)}
    s_mul_i32 {s(sT)}, {s(sT)}, 20480
    s_add_u32 {s(sT)}, {s(sT)}, {WS_O}""")
    for ks in range(20):
        if ks % 4 == 0 and ks > 0:
            k(f"s_add_u32 {s(sT)}, {s(sT)}, 4096")
        k(f"buffer_load_dwordx4 {v(OF+4*ks,4)}, {v(vO)}, {s(sWS,4)}, {s(sT)} offen offset:{(ks%4)*1024}{SC1}")
    def rd(f, ks):
        a = aW0 if ks < 10 else aW1
        for nt in range(5):
            for r in range(2):
                k(f"ds_read_b64_tr_b16 {v(WF[f]+4*nt+2*r,2)}, {v(a)} offset:{(ks%10)*5120 + r*2560 + nt*32}")
    k("s_barrier")
    rd(0, 0)
    for ks in range(20):
        f = ks & 1
        if ks < 19:
            rd(f ^ 1, ks + 1)
            k("s_waitcnt lgkmcnt(10)")
        else:
            k("s_waitcnt lgkmcnt(0)")
        if ks % 4 == 0:
            k(f"s_waitcnt vmcnt({16 - ks})")
        for nt in range(5):
            k(f"v_mfma_f32_16x16x32_bf16 {v(ACC+4*nt,4)}, {v(WF[f]+4*nt,4)}, {v(OF+4*ks,4)}, {v(ACC+4*nt,4)}")
    k(f"""v_and_b32 {v(vT[0])}, 15, {v(vLane)}
    s_lshl_b32 {s(sT)}, {s(sTB)}, 6
    s_lshl_b32 {s(sT2)}, {s(sW)}, 4
    s_add_u32 {s(sT)}, {s(sT)}, {s(sT2)}
    v_add_u32 {v(vT[0])}, {s(sT)}, {v(vT[0])}
    v_mul_u32_u24 {v(vT[0])}, 2560, {v(vT[0])}
    v_lshrrev_b32 {v(vT[1])}, 4, {v(vLane)}
    v_lshl_add_u32 {v(vT[0])}, {v(vT[1])}, 3, {v(vT[0])}
    s_mul_i32 {s(sT)}, {s(sCB)}, 160
    s_nop 7""")
    for nt in range(5):
        p = WF[0] + 2*nt
        k(f"v_cvt_pk_bf16_f32 {v(p)}, {v(ACC+4*nt)}, {v(ACC+4*nt+1)}")
        k(f"v_cvt_pk_bf16_f32 {v(p+1)}, {v(ACC+4*nt+2)}, {v(ACC+4*nt+3)}")
        k(f"buffer_store_dwordx2 {v(p,2)}, {v(vT[0])}, {s(sOUT,4)}, {s(sT)} offen offset:{nt*32}")
    k("s_branch L_p3_end")
    k.label("L_p3_loader")
    mk_srd(k, sWO, PWO, D * D * 2); mk_srd(k, sQ, PBQ, S * D * 2)
    vP = [OF + i for i in range(5)]
    k(f"s_sub_u32 {s(sLW)}, {s(sW)}, 4")
    k(f"s_mul_i32 {s(sT2)}, {s(sCB)}, 160")
    for ph in range(5):
        k(f"v_add_u32 {v(vT[0])}, {64*ph}, {v(vLane)}")
        div10(k, vT[0], vT[1], vT[2], vT[3])
        k(f"""v_mul_u32_u24 {v(vP[ph])}, 1280, {v(vT[1])}
        v_lshl_add_u32 {v(vP[ph])}, {v(vT[2])}, 4, {v(vP[ph])}
        v_add_u32 {v(vP[ph])}, {s(sT2)}, {v(vP[ph])}""")
    k(f"""s_mul_i32 {s(sB)}, {s(sLW)}, {32*1280}
    s_mul_i32 {s(sL)}, {s(sLW)}, 5120""")
    for i in range(5):
        for ph in range(5):
            k(f"s_add_u32 m0, {s(sL)}, {i*4*5120 + ph*1024}")
            k(f"s_add_u32 {s(sT)}, {s(sB)}, {i*4*32*1280}")
            k(f"buffer_load_dwordx4 {v(vP[ph])}, {s(sWO,4)}, {s(sT)} offen lds")
    vZ = vT[6]
    k(f"""v_lshrrev_b32 {v(vZ)}, 3, {v(vLane)}
    v_lshlrev_b32 {v(vZ)}, 12, {v(vZ)}
    v_and_b32 {v(vT[0])}, 7, {v(vLane)}
    v_lshl_add_u32 {v(vZ)}, {v(vT[0])}, 4, {v(vZ)}""")
    for i in range(3):
        k(f"""s_add_u32 {s(sN)}, {s(sLW)}, {4*i}
        s_min_u32 {s(sN)}, {s(sN)}, 9
        s_lshl_b32 {s(sT2)}, {s(sN)}, 10
        s_lshl_b32 {s(sN)}, {s(sN)}, 6
        v_add_u32 {v(vT[0])}, {s(sN)}, {v(vLane)}""")
        div10(k, vT[0], vT[1], vT[2], vT[3])
        k(f"""v_mul_u32_u24 {v(vT[1])}, 1280, {v(vT[1])}
        v_lshl_add_u32 {v(vT[1])}, {v(vT[2])}, 4, {v(vT[1])}
        s_mul_i32 {s(sT)}, {s(sTB)}, {64*1280}
        s_mul_i32 {s(sN)}, {s(sCB)}, 160
        s_add_u32 {s(sT)}, {s(sT)}, {s(sN)}
        s_add_u32 m0, {s(sT2)}, {QI}
        s_nop 0
        buffer_load_dwordx4 {v(vT[1])}, {s(sQ,4)}, {s(sT)} offen lds""")
    k(f"""s_add_u32 {s(sT)}, {s(sCB)}, {CNT_Z}
    s_lshl_b32 {s(sT)}, {s(sT)}, 8
    v_mov_b32 {v(vT[0])}, {s(sT)}""")
    wait_counters(k, vT[0], 80)
    for i in range(3):
        k(f"""s_add_u32 {s(sN)}, {s(sLW)}, {4*i}
        s_min_u32 {s(sN)}, {s(sN)}, 9
        s_mul_i32 {s(sT)}, {s(sCB)}, 80
        s_lshl_b32 {s(sT2)}, {s(sN)}, 3
        s_add_u32 {s(sT)}, {s(sT)}, {s(sT2)}
        s_lshl_b32 {s(sT)}, {s(sT)}, 12
        s_lshl_b32 {s(sT2)}, {s(sTB)}, 7
        s_add_u32 {s(sT)}, {s(sT)}, {s(sT2)}
        s_add_u32 {s(sT)}, {s(sT)}, {WS_Z}
        s_lshl_b32 {s(sT2)}, {s(sN)}, 10
        s_add_u32 m0, {s(sT2)}, {ZI}
        s_nop 0
        buffer_load_dwordx4 {v(vZ)}, {s(sWS,4)}, {s(sT)} offen{SC1} lds""")
    k("s_waitcnt vmcnt(0)")
    k("s_barrier")
    base = (OF + 8 + 3) // 4 * 4
    Z, Q, zf, qf, o = base, base + 4, base + 8, base + 16, base + 24
    aZ, aQ, aO, oc = base + 28, base + 29, base + 30, base + 31
    for i in range(3):
        k(f"""v_lshrrev_b32 {v(oc)}, 4, {v(vLane)}
        v_add_u32 {v(oc)}, {4*i}, {v(oc)}
        v_min_u32 {v(vT[0])}, 9, {v(oc)}
        v_lshlrev_b32 {v(vT[1])}, 3, {v(vT[0])}
        v_bfe_u32 {v(vT[2])}, {v(vLane)}, 2, 2
        v_add_u32 {v(vT[1])}, {v(vT[1])}, {v(vT[2])}
        v_lshlrev_b32 {v(aZ)}, 7, {v(vT[1])}
        v_and_b32 {v(vT[2])}, 3, {v(vLane)}
        v_lshl_add_u32 {v(aZ)}, {v(vT[2])}, 3, {v(aZ)}
        s_lshl_b32 {s(sT)}, {s(sLW)}, 5
        s_add_u32 {s(sT)}, {s(sT)}, {ZI}
        v_add_u32 {v(aZ)}, {s(sT)}, {v(aZ)}
        v_and_b32 {v(vT[1])}, 15, {v(vLane)}
        s_lshl_b32 {s(sT)}, {s(sLW)}, 4
        v_add_u32 {v(vT[1])}, {s(sT)}, {v(vT[1])}
        v_mul_u32_u24 {v(aQ)}, 160, {v(vT[1])}
        v_lshl_add_u32 {v(aQ)}, {v(vT[0])}, 4, {v(aQ)}
        v_add_u32 {v(aQ)}, {QI}, {v(aQ)}""")
        k(f"ds_read_b64_tr_b16 {v(Z,2)}, {v(aZ)}")
        k(f"ds_read_b64_tr_b16 {v(Z+2,2)}, {v(aZ)} offset:512")
        k(f"ds_read_b128 {v(Q,4)}, {v(aQ)}")
        k(f"""s_lshl_b32 {s(sT)}, {s(sTB)}, 6
        v_add_u32 {v(vT[1])}, {s(sT)}, {v(vT[1])}
        v_mul_u32_u24 {v(aO)}, 2560, {v(vT[1])}
        v_lshl_add_u32 {v(aO)}, {v(oc)}, 4, {v(aO)}
        s_mul_i32 {s(sT)}, {s(sCB)}, 160
        s_add_u32 {s(sT)}, {s(sT)}, 1280
        v_cmp_gt_u32 vcc, 10, {v(oc)}
        v_mov_b32 {v(vT[2])}, 0x7ffffff0
        s_waitcnt lgkmcnt(0)
        v_cndmask_b32 {v(aO)}, {v(vT[2])}, {v(aO)}, vcc""")
        for d in range(4):
            k(f"v_lshlrev_b32 {v(zf+2*d)}, 16, {v(Z+d)}")
            k(f"v_and_b32 {v(zf+2*d+1)}, 0xffff0000, {v(Z+d)}")
            k(f"v_lshlrev_b32 {v(qf+2*d)}, 16, {v(Q+d)}")
            k(f"v_and_b32 {v(qf+2*d+1)}, 0xffff0000, {v(Q+d)}")
        for e in range(8):
            k(f"v_mul_f32 {v(zf+e)}, {v(zf+e)}, {v(qf+e)}")
        for d in range(4):
            k(f"v_cvt_pk_bf16_f32 {v(o+d)}, {v(zf+2*d)}, {v(zf+2*d+1)}")
        k(f"buffer_store_dwordx4 {v(o,4)}, {v(aO)}, {s(sOUT,4)}, {s(sT)} offen")
        k("s_nop 1")
    k.label("L_p3_end")
    return R.hi, P3_LDS
```

```python
from asm import *
from layout import *

sWS = 4
sW = 8
sDBG = 84
sSY0, sSY1 = 92, 93
sSYM = 94
vLane = 1
vSY0, vSY1 = 2, 3

WS_CNT = 0x3000000
CNT_STRIDE = 256
CNT_QKV = 0
CNT_UR = 16
CNT_Z = 24
CNT_O = 32
NCNT = 40
def cnt_off(i): return WS_CNT + i * CNT_STRIDE
SPIN_MAX = 1 << 22

def init_counters(k):
    lab = k.newlabel("noinit")
    k(f"""s_xor_b32 {s(sSY0)}, s2, 225
    s_or_b32 {s(sSY0)}, {s(sSY0)}, {s(sW)}
    s_cmp_lg_u32 {s(sSY0)}, 0
    s_cbranch_scc1 {lab}
    v_lshlrev_b32 {v(vSY0)}, 8, {v(vLane)}
    v_mov_b32 {v(vSY1)}, 0
    s_mov_b32 {s(sSY0)}, {WS_CNT}
    buffer_store_dword {v(vSY1)}, {v(vSY0)}, {s(sWS,4)}, {s(sSY0)} offen sc1
    s_waitcnt vmcnt(0)
    v_mov_b32 {v(vSY0)}, 0
    v_mov_b32 {v(vSY1)}, 1
    global_store_dword {v(vSY0)}, {v(vSY1)}, {s(sDBG,2)} offset:128 sc1
    s_waitcnt vmcnt(0)""")
    k.label(lab)

def wait_init(k):
    l0 = k.newlabel("winit"); l1 = k.newlabel("winitd")
    k(f"s_mov_b32 {s(sSY0)}, 0")
    k(f"v_mov_b32 {v(vSY0)}, 0")
    k.label(l0)
    k(f"""global_load_dword {v(vSY1)}, {v(vSY0)}, {s(sDBG,2)} offset:128 sc1
    s_waitcnt vmcnt(0)
    v_readfirstlane_b32 {s(sSY1)}, {v(vSY1)}
    s_add_u32 {s(sSY0)}, {s(sSY0)}, 1
    s_cmp_lg_u32 {s(sSY1)}, 0
    s_cbranch_scc1 {l1}
    s_sleep 2
    s_cmp_lt_u32 {s(sSY0)}, {SPIN_MAX}
    s_cbranch_scc1 {l0}""")
    k.label(l1)

def signal(k, s_idx, amount):
    k(f"""s_lshl_b32 {s(sSY0)}, {s(s_idx)}, 8
    s_add_u32 {s(sSY0)}, {s(sSY0)}, {WS_CNT}
    v_mov_b32 {v(vSY0)}, 0
    v_mov_b32 {v(vSY1)}, {amount}
    s_mov_b64 {s(sSYM,2)}, exec
    s_mov_b64 exec, 1
    buffer_atomic_add {v(vSY1)}, {v(vSY0)}, {s(sWS,4)}, {s(sSY0)} offen
    s_mov_b64 exec, {s(sSYM,2)}""")

def wait_counters(k, voff, target):
    l0 = k.newlabel("wcnt"); l1 = k.newlabel("wcntd")
    k(f"s_mov_b32 {s(sSY0)}, 0")
    k(f"s_mov_b32 {s(sSY1)}, {WS_CNT}")
    k.label(l0)
    k(f"""buffer_load_dword {v(vSY1)}, {v(voff)}, {s(sWS,4)}, {s(sSY1)} offen sc1
    s_add_u32 {s(sSY0)}, {s(sSY0)}, 1
    s_waitcnt vmcnt(0)
    v_cmp_le_u32 vcc, {target}, {v(vSY1)}
    s_nop 1
    s_cmp_eq_u64 vcc, exec
    s_cbranch_scc1 {l1}
    s_sleep 1
    s_cmp_lt_u32 {s(sSY0)}, {SPIN_MAX}
    s_cbranch_scc1 {l0}""")
    k.label(l1)
```

```python
import sys
from f_common import *
from sync import *
import f_p1, f_conv, f_attn, f_p3
NAME = "concat_heads__softmax_full_mha__ssm_conv_h3__prompt_kernel"
HEADER = """; Kernarg layout (96 bytes, pointers only): A_x, A_wqkv, A_wo, B_q, B_k, B_v, B_shift_k, B_ssm_k, B_ssm_D, d_out, d_debug, d_ws
; @launch grid=(256,1,1) block=(512,1,1) lds=163840
"""
def build(opts=None):
    opts = opts or {}
    k = Asm()
    k.lines.append(entry(NAME))
    k("s_cmp_ge_u32 s2, 256")
    k("s_cbranch_scc1 L_exit")
    k("s_load_dwordx16 s[64:79], s[0:1], 0")
    k("s_load_dwordx8 s[80:87], s[0:1], 64")
    k(f"v_and_b32 {v(vLane)}, 63, v0")
    k("v_lshrrev_b32 v2, 6, v0")
    k("s_nop 0")
    k(f"v_readfirstlane_b32 {s(sW)}, v2")
    stamp(k, opts, 0)
    k("s_waitcnt lgkmcnt(0)")
    mk_srd(k, sWS, PWS, WS_BYTES)
    init_counters(k)
    hs = []
    hs.append(f_p1.emit_p1(k, opts))
    stamp(k, opts, 3)
    hs.append(f_conv.emit_conv(k, opts))
    hs.append(f_attn.emit_attn(k, opts))
    hs.append(f_p3.emit_p3(k, opts))
    if opts.get("stamp"):
        k("s_waitcnt vmcnt(0)")
        stamp(k, opts, 7)
        stamp_flush(k, opts, 8)
    k.label("L_exit")
    k("s_endpgm")
    nv = max(h[0] for h in hs); lds = max(h[1] for h in hs)
    assert lds <= 163840
    src = HEADER + '.amdgcn_target "amdgcn-amd-amdhsa--gfx950"\n.text\n' + k.text() + kd(NAME, nv, ns=96)
    return src, [NAME], [163840]
if __name__ == "__main__":
    src, names, lds = build()
    out = sys.argv[1] if len(sys.argv) > 1 else "concat_heads__softmax_full_mha__ssm_conv_h3__prompt.s"
    open(out, "w").write(src)
    print(names, lds, len(src))
```

```python
from f_common import *
from sync import *
import f_conv

GS = 1024 + 32
HALF = 11 * GS
SLOT = 2 * HALF
NSLOT = 4
XCH = 93184
PRIV = XCH
PRIVSZ = 3072
ATTN_LDS = XCH + 8 * 3072

def emit_attn(k, opts):
    R = Regs(4)
    sHEAD, sT, sC, sSLOT, sTMP, sTMP2, sKH, sQG, sQB = 12, 18, 19, 13, 14, 15, 16, 17, 33
    sMSK = 20; sMSK2 = 22
    sSRC = [24, 25, 26]; sDST = [27, 28, 29]; sDO = 30; sKV0 = 31; sND = 32
    aK1c, aK2c, aVc, aK1n, aOA, aOB = [R.alloc() for _ in range(6)]
    lK1, lK2, lV, vDMA = [R.alloc() for _ in range(4)]
    vT = [R.alloc() for _ in range(6)]
    Q1 = [R.alloc(4, 4), R.alloc(4, 4)]
    K1 = R.alloc(4, 4)
    Q2 = [R.alloc(2, 2), R.alloc(2, 2)]
    K2 = R.alloc(2, 2)
    V = R.alloc(8, 4)
    P = [R.alloc(8, 4), R.alloc(8, 4)]
    SS = [[R.alloc(16, 4), R.alloc(16, 4)], [R.alloc(16, 4), R.alloc(16, 4)]]
    O = [R.alloc(16, 4), R.alloc(16, 4)]

    k(f"""s_and_b32 {s(sHEAD)}, s2, 7
    s_lshl_b32 {s(sHEAD)}, {s(sHEAD)}, 2
    s_bfe_u32 {s(sTMP)}, s2, 0x20003
    s_add_u32 {s(sHEAD)}, {s(sHEAD)}, {s(sTMP)}
    s_lshr_b32 {s(sQB)}, s2, 5
    s_lshl_b32 {s(sT)}, {s(sQB)}, 3
    s_and_b32 {s(sQG)}, {s(sW)}, 3
    s_lshr_b32 {s(sKH)}, {s(sW)}, 2
    s_lshl_b32 {s(sTMP)}, {s(sQG)}, 1
    s_add_u32 {s(sT)}, {s(sT)}, {s(sTMP)}
    v_lshlrev_b32 {v(vDMA)}, 4, {v(vLane)}
    v_and_b32 {v(vT[0])}, 31, {v(vLane)}
    v_lshlrev_b32 {v(lK2)}, 3, {v(vT[0])}
    v_lshrrev_b32 {v(vT[1])}, 5, {v(vLane)}""")
    vQ = vT[2]
    k(f"""v_lshlrev_b32 {v(vQ)}, 15, {v(vT[1])}
    v_add_u32 {v(vQ)}, {v(vQ)}, {v(lK2)}
    s_mul_i32 {s(sKV0)}, {s(sHEAD)}, {5*GRP}
    s_lshl_b32 {s(sTMP)}, {s(sT)}, 8
    s_add_u32 {s(sTMP)}, {s(sTMP)}, {s(sKV0)}
    s_add_u32 {s(sTMP2)}, {s(sTMP)}, {GRP}""")
    for i in range(3):
        k(f"""s_add_u32 {s(sDST[i])}, {s(sW)}, {8*i}
        s_cmp_ge_u32 {s(sDST[i])}, 10
        s_cselect_b32 {s(sSRC[i])}, 1, 0
        s_mul_i32 {s(sND)}, {s(sSRC[i])}, 10
        s_sub_u32 {s(sDST[i])}, {s(sDST[i])}, {s(sND)}
        s_mul_i32 {s(sND)}, {s(sSRC[i])}, {HALF}
        s_lshl_b32 {s(sSRC[i])}, {s(sSRC[i])}, 13
        s_add_u32 {s(sSRC[i])}, {s(sSRC[i])}, {s(sKV0)}
        s_add_u32 {s(sSRC[i])}, {s(sSRC[i])}, {WS_K}
        s_cmp_ge_u32 {s(sDST[i])}, 5
        s_cselect_b32 {s(sDO)}, {PART - 5*GRP}, 0
        s_add_u32 {s(sSRC[i])}, {s(sSRC[i])}, {s(sDO)}
        s_lshl_b32 {s(sDO)}, {s(sDST[i])}, 14
        s_add_u32 {s(sSRC[i])}, {s(sSRC[i])}, {s(sDO)}
        s_mul_i32 {s(sDST[i])}, {s(sDST[i])}, {GS}
        s_add_u32 {s(sDST[i])}, {s(sDST[i])}, {s(sND)}""")
    lab = k.newlabel("nopoll")
    k(f"""s_cmp_lg_u32 {s(sW)}, 0
    s_cbranch_scc1 {lab}
    v_min_u32 {v(vT[3])}, 5, {v(vLane)}
    v_and_b32 {v(vT[4])}, 1, {v(vT[3])}
    v_lshlrev_b32 {v(vT[4])}, 2, {v(vT[4])}
    s_mul_i32 {s(sND)}, {s(sHEAD)}, 5
    v_add_u32 {v(vT[4])}, {s(sND)}, {v(vT[4])}
    v_lshrrev_b32 {v(vT[4])}, 5, {v(vT[4])}
    v_lshrrev_b32 {v(vT[3])}, 1, {v(vT[3])}
    v_mul_u32_u24 {v(vT[3])}, 5, {v(vT[3])}
    v_add_u32 {v(vT[3])}, {v(vT[3])}, {v(vT[4])}
    v_cmp_gt_u32 vcc, 6, {v(vLane)}
    s_nop 1
    v_cndmask_b32 {v(vT[3])}, {CNT_W}, {v(vT[3])}, vcc
    v_lshlrev_b32 {v(vT[3])}, 8, {v(vT[3])}""")
    wait_counters(k, vT[3], 64)
    k.label(lab)
    k("s_barrier")
    trace(k, opts, 16)
    stamp(k, opts, 4)
    for t in range(2):
        k(f"buffer_load_dwordx2 {v(Q1[t],2)}, {v(vQ)}, {s(sWS,4)}, {s(sTMP)} offen offset:{t*256}{SC1}")
        k(f"buffer_load_dwordx2 {v(Q1[t]+2,2)}, {v(vQ)}, {s(sWS,4)}, {s(sTMP2)} offen offset:{t*256}{SC1}")
    k(f"s_add_u32 {s(sTMP)}, {s(sTMP)}, {4*GRP}")
    for t in range(2):
        k(f"buffer_load_dwordx2 {v(Q2[t],2)}, {v(lK2)}, {s(sWS,4)}, {s(sTMP)} offen offset:{t*256}{SC1}")
    def dma_piece(i, slot_const=None):
        lab = None
        if slot_const is None:
            k(f"s_add_u32 m0, {s(sDST[i])}, {s(sSLOT)}")
        else:
            k(f"s_add_u32 m0, {s(sDST[i])}, {slot_const}")
        k("s_nop 0")
        k(f"buffer_load_dwordx4 {v(vDMA)}, {s(sWS,4)}, {s(sSRC[i])} offen{SC1} lds")
        k(f"s_add_u32 {s(sSRC[i])}, {s(sSRC[i])}, 1024")
        if lab: k.label(lab)
    dma_piece(0, 0); dma_piece(1, 0)
    lab = k.newlabel("p2")
    k(f"s_cmp_ge_u32 {s(sW)}, 4")
    k(f"s_cbranch_scc1 {lab}")
    dma_piece(2, 0)
    k.label(lab)
    dma_piece(0, SLOT); dma_piece(1, SLOT)
    k(f"""s_mul_i32 {s(sND)}, {s(sW)}, {HALF}
    s_add_u32 {s(sND)}, {s(sND)}, {10*GS}
    v_add_u32 {v(vT[0])}, {s(sND)}, {v(vDMA)}
    v_mov_b32 {v(V)}, 0x3f80
    v_mov_b32 {v(V+1)}, 0
    v_mov_b32 {v(V+2)}, 0x3f80
    v_mov_b32 {v(V+3)}, 0
    ds_write_b128 {v(vT[0])}, {v(V,4)}""")
    k(f"""s_mul_i32 {s(sTMP)}, {s(sKH)}, {HALF}
    v_mul_u32_u24 {v(lK1)}, {2*GS}, {v(vT[1])}
    v_add_u32 {v(lK1)}, {v(lK1)}, {v(lK2)}
    v_add_u32 {v(lK1)}, {s(sTMP)}, {v(lK1)}
    v_add_u32 {v(lK2)}, {4*GS}, {v(lK2)}
    v_add_u32 {v(lK2)}, {s(sTMP)}, {v(lK2)}
    v_lshlrev_b32 {v(vT[0])}, 2, {v(vT[1])}
    v_bfe_u32 {v(vT[3])}, {v(vLane)}, 2, 2
    v_add_u32 {v(vT[0])}, {v(vT[0])}, {v(vT[3])}
    v_lshlrev_b32 {v(lV)}, 3, {v(vT[0])}
    v_and_b32 {v(vT[0])}, 3, {v(vLane)}
    v_and_b32 {v(vT[3])}, 1, {v(vLane)}
    v_add_u32 {v(vT[3])}, 4, {v(vT[3])}
    v_bfe_u32 {v(vT[4])}, {v(vLane)}, 4, 1
    v_cmp_eq_u32 vcc, 1, {v(vT[4])}
    s_add_u32 {s(sTMP)}, {s(sTMP)}, {5*GS}
    s_nop 0
    v_cndmask_b32 {v(vT[0])}, {v(vT[0])}, {v(vT[3])}, vcc
    v_mul_u32_u24 {v(vT[0])}, {GS}, {v(vT[0])}
    v_add_u32 {v(lV)}, {v(lV)}, {v(vT[0])}
    v_add_u32 {v(lV)}, {s(sTMP)}, {v(lV)}
    v_mov_b32 {v(aK1c)}, {v(lK1)}
    v_mov_b32 {v(aK2c)}, {v(lK2)}
    v_mov_b32 {v(aVc)}, {v(lV)}
    s_mov_b32 {s(sSLOT)}, {2*SLOT}
    s_mov_b32 {s(sND)}, 0
    s_mov_b32 {s(sDO)}, {2*SLOT}
    s_mov_b32 {s(sC)}, 0""")
    for t in range(2):
        for i in range(16):
            k(f"v_mov_b32 {v(O[t]+i)}, 0")
    k(f"v_mov_b32 {v(SS[1][1]+14)}, 0")
    k(f"v_mov_b32 {v(SS[1][1]+15)}, 0")
    for i in range(4):
        k(f"v_mov_b32 {v(P[1]+4+i)}, 0")
        k(f"v_mov_b32 {v(V+4+i)}, 0")
    k("s_waitcnt vmcnt(2) lgkmcnt(0)")
    f_conv.z_signal(k)
    k(f"v_cmp_gt_u32 vcc, 32, {v(vLane)}")
    k("s_nop 1")
    for t in range(2):
        k(f"v_cndmask_b32 {v(Q2[t])}, 0, {v(Q2[t])}, vcc")
        k(f"v_cndmask_b32 {v(Q2[t]+1)}, 0, {v(Q2[t]+1)}, vcc")
    k("s_barrier")
    trace(k, opts, 17)
    def qk1(dst, t, cop="0"):
        k(f"v_mfma_f32_32x32x16_bf16 {v(dst,16)}, {v(K1,4)}, {v(Q1[t],4)}, {cop}")
    def qk2(dst, t):
        k(f"v_mfma_f32_32x32x8_bf16 {v(dst,16)}, {v(K2,2)}, {v(Q2[t],2)}, {v(dst,16)}")
    def pv(t, half):
        k(f"v_mfma_f32_32x32x16_bf16 {v(O[t],16)}, {v(V+4*half,4)}, {v(P[t]+4*half,4)}, {v(O[t],16)}")
    def rdK1(tile, par):
        k(f"ds_read_b64 {v(K1,2)}, {v(aK1c)} offset:{par*SLOT + tile*256}")
        k(f"ds_read_b64 {v(K1+2,2)}, {v(aK1c)} offset:{par*SLOT + tile*256 + GS}")
    def rdK2(tile, par):
        k(f"ds_read_b64 {v(K2,2)}, {v(aK2c)} offset:{par*SLOT + tile*256}")
    def rdV(tile, par, half):
        for q in (2*half, 2*half+1):
            k(f"ds_read_b64_tr_b16 {v(V+2*q,2)}, {v(aVc)} offset:{par*SLOT + tile*256 + q*64}")
    rdK1(0, 0); rdK2(0, 0)
    k("s_waitcnt lgkmcnt(0)")
    for t in range(2):
        qk1(SS[0][t], t); qk2(SS[0][t], t)
    rdK1(1, 0); rdK2(1, 0); rdV(0, 0, 0)
    k("s_waitcnt lgkmcnt(0)")
    k("s_nop 7")
    psw = opts.get("psw", 22)
    def loop(grp):
        name = f"L_attn_loop{grp}"
        if psw is not None and psw >= 0: k(f"s_setprio {2 if grp == 'A' else 1}")
        k(".p2align 6")
        k.label(name)
        def piece(i, sbase, off, cond):
            lab = None
            if cond:
                lab = k.newlabel("nd")
                k(f"s_cmp_eq_u32 {s(sC)}, 3")
                k(f"s_cbranch_scc1 {lab}")
            k(f"s_add_u32 {s(sTMP)}, {s(sDST[i])}, {s(sbase)}")
            if off: k(f"s_add_u32 m0, {s(sTMP)}, {off}")
            else: k(f"s_mov_b32 m0, {s(sTMP)}")
            k(f"s_add_u32 {s(sSRC[i])}, {s(sSRC[i])}, 1024")
            k(f"s_sub_u32 {s(sTMP)}, {s(sSRC[i])}, 1024")
            k(f"buffer_load_dwordx4 {v(vDMA)}, {s(sWS,4)}, {s(sTMP)} offen{SC1} lds")
            if lab: k.label(lab)
        for par in range(2):
            for i in range(4):
                cur = SS[i & 1]; nxt = SS[(i + 1) & 1]; prv = nxt
                def e(t, r): k(f"v_exp_f32 {v(cur[t]+r)}, {v(cur[t]+r)}")
                def c(t, p, buf=None):
                    b = (buf or cur)[t]
                    k(f"v_cvt_pk_bf16_f32 {v(P[t]+p)}, {v(b+2*p)}, {v(b+2*p+1)}")
                t1 = i + 1; t2 = i + 2
                def prio(step):
                    pos = ((i - 2) % 4) * 8 + step - 3
                    if pos < 0: pos += 32
                    if grp == 'A' and psw is not None and psw >= 0 and pos == psw: k("s_setprio 0")
                def par_of(t):
                    if t < 4: return t, par
                    return t - 4, (1 if par == 0 else 0)
                prio(1)
                k("s_waitcnt lgkmcnt(3)")
                qk1(nxt[0], 0)
                e(0,0); c(1, 7, prv); e(0,1); e(0,2); c(0,0); e(0,3)
                prio(2)
                pv(1, 1)
                rdV(i, par, 1)
                e(0,4); c(0,1); e(0,5); e(0,6); c(0,2); e(0,7)
                qk1(nxt[1], 1)
                if i == 2:
                    k("s_waitcnt vmcnt(0)")
                    k("s_barrier")
                    if grp == 'A' and psw is not None and psw >= 0: k("s_setprio 2")
                    if par == 1:
                        k(f"v_add_u32 {v(aK1c)}, {s(sDO)}, {v(aK1c)}")
                        k(f"v_add_u32 {v(aK2c)}, {s(sDO)}, {v(aK2c)}")
                else:
                    prio(3)
                rdK1(*par_of(t2))
                if i == 2: piece(0, sSLOT, par*SLOT, True)
                if i == 3: piece(1, sSLOT, par*SLOT, True)
                if i == 0 and grp == 'A':
                    if par == 1: piece(2, sSLOT, 0, True)
                    else: piece(2, sND, SLOT, False)
                e(0,8); c(0,3); e(0,9); e(0,10); c(0,4); e(0,11)
                prio(4)
                k("s_waitcnt lgkmcnt(4)")
                pv(0, 0)
                e(0,12); c(0,5); e(0,13); e(0,14); c(0,6); e(0,15)
                prio(5)
                qk2(nxt[0], 0)
                e(1,0); c(0,7); e(1,1); e(1,2); c(1,0); e(1,3)
                prio(6)
                k("s_waitcnt lgkmcnt(2)")
                pv(0, 1)
                e(1,4); c(1,1); e(1,5); e(1,6); c(1,2); e(1,7)
                prio(7)
                qk2(nxt[1], 1)
                rdK2(*par_of(t2))
                if par == 1 and i == 3:
                    k(f"v_add_u32 {v(aVc)}, {s(sDO)}, {v(aVc)}")
                e(1,8); c(1,3); e(1,9); e(1,10); c(1,4); e(1,11)
                prio(8)
                pv(1, 0)
                rdV(*par_of(t1), 0)
                e(1,12); c(1,5); e(1,13); e(1,14); c(1,6); e(1,15)
        k(f"""s_sub_u32 {s(sDO)}, 0, {s(sDO)}
        s_mov_b32 {s(sTMP)}, {s(sND)}
        s_mov_b32 {s(sND)}, {s(sSLOT)}
        s_mov_b32 {s(sSLOT)}, {s(sTMP)}
        s_add_u32 {s(sC)}, {s(sC)}, 1
        s_cmp_lt_u32 {s(sC)}, 4
        s_cbranch_scc1 {name}""")
    k(f"s_cmp_ge_u32 {s(sW)}, 4")
    k("s_cbranch_scc1 L_attn_grpB")
    loop('A')
    k("s_branch L_attn_loopdone")
    k.label("L_attn_grpB")
    loop('B')
    k.label("L_attn_loopdone")
    bal = psw
    last = SS[1]
    k(f"v_cvt_pk_bf16_f32 {v(P[1]+7)}, {v(last[1]+14)}, {v(last[1]+15)}")
    k("s_waitcnt lgkmcnt(0)")
    k("s_nop 1")
    pv(1, 1)
    stamp(k, opts, 5)
    trace(k, opts, 18)
    if bal is not None: k("s_setprio 0")
    vA = vT[2]; vL = vT[0]; vX = vT[1]
    OK_ = SS[0][0]
    k(f"""s_mul_i32 {s(sTMP)}, {s(sW)}, 3072
    s_add_u32 {s(sTMP)}, {s(sTMP)}, {XCH}
    v_add_u32 {v(vA)}, {s(sTMP)}, {v(vDMA)}
    s_nop 15
    s_cmp_ge_u32 {s(sW)}, 4
    s_cbranch_scc1 L_attn_xb""")
    for q in range(3):
        k(f"ds_write_b128 {v(vA)}, {v(O[1]+4*q,4)} offset:{q*1024}")
    for i in range(12):
        k(f"v_mov_b32 {v(OK_+i)}, {v(O[0]+i)}")
    k("s_branch L_attn_xc")
    k.label("L_attn_xb")
    for q in range(3):
        k(f"ds_write_b128 {v(vA)}, {v(O[0]+4*q,4)} offset:{q*1024}")
    for i in range(12):
        k(f"v_mov_b32 {v(OK_+i)}, {v(O[1]+i)}")
    for i in range(4):
        k(f"v_mov_b32 {v(Q1[0]+i)}, {v(Q1[1]+i)}")
    for i in range(2):
        k(f"v_mov_b32 {v(Q2[0]+i)}, {v(Q2[1]+i)}")
    k(f"s_add_u32 {s(sT)}, {s(sT)}, 1")
    k.label("L_attn_xc")
    OO = O[0]
    k(f"""s_xor_b32 {s(sTMP)}, {s(sW)}, 4
    s_mul_i32 {s(sTMP)}, {s(sTMP)}, 3072
    s_add_u32 {s(sTMP)}, {s(sTMP)}, {XCH}
    v_add_u32 {v(vX)}, {s(sTMP)}, {v(vDMA)}
    s_waitcnt vmcnt(0) lgkmcnt(0)
    s_barrier""")
    if "after_xch" in opts: opts["after_xch"](k)
    for q in range(3):
        k(f"ds_read_b128 {v(OO+4*q,4)}, {v(vX)} offset:{q*1024}")
    k("s_waitcnt lgkmcnt(0)")
    for i in range(12):
        k(f"v_add_f32 {v(OO+i)}, {v(OO+i)}, {v(OK_+i)}")
    def get_l():
        k(f"""v_mov_b32 {v(vX)}, {v(OO+8)}
        v_mov_b32 {v(vL)}, {v(OO+8)}
        s_nop 1
        v_permlane32_swap_b32 {v(vX)}, {v(vL)}""")
    get_l()
    k(f"v_mul_f32 {v(vX)}, 0, {v(OO)}")
    for i in range(1, 12):
        k(f"v_fma_f32 {v(vX)}, {v(OO+i)}, 0, {v(vX)}")
    k(f"""s_mov_b32 {s(sTMP)}, {f32bits(2.0**-90):#x}
    s_mov_b32 {s(sTMP2)}, {f32bits(2.0**90):#x}
    v_cmp_le_f32 {s(sMSK,2)}, {s(sTMP)}, {v(vL)}
    v_cmp_ge_f32 {s(sMSK2,2)}, {s(sTMP2)}, {v(vL)}
    v_cmp_o_f32 vcc, {v(vX)}, {v(vX)}
    s_nop 1
    s_and_b64 {s(sMSK,2)}, {s(sMSK,2)}, {s(sMSK2,2)}
    s_and_b64 {s(sMSK,2)}, {s(sMSK,2)}, vcc
    s_cmp_eq_u64 {s(sMSK,2)}, -1
    s_cbranch_scc1 L_attn_fin""")
    C = SS[1][0]; SA = SS[1][1]
    sPB = sSLOT
    k(f"""s_xor_b32 {s(sTMP)}, {s(sW)}, 4
    s_mul_i32 {s(sTMP)}, {s(sTMP)}, 3072
    s_add_u32 {s(sPB)}, {s(sTMP)}, {XCH}""")
    aP1, aP2, aPV, vS = aK1c, aK2c, aVc, aK1n
    k(f"""v_and_b32 {v(vT[3])}, 31, {v(vLane)}
    v_lshlrev_b32 {v(vT[3])}, 3, {v(vT[3])}
    v_lshrrev_b32 {v(vT[4])}, 5, {v(vLane)}
    v_lshl_add_u32 {v(aP1)}, {v(vT[4])}, 9, {v(vT[3])}
    v_add_u32 {v(aP1)}, {s(sPB)}, {v(aP1)}
    v_add_u32 {v(aP2)}, 1024, {v(vT[3])}
    v_add_u32 {v(aP2)}, {s(sPB)}, {v(aP2)}
    v_lshlrev_b32 {v(vT[4])}, 2, {v(vT[4])}
    v_bfe_u32 {v(vT[5])}, {v(vLane)}, 2, 2
    v_add_u32 {v(vT[4])}, {v(vT[4])}, {v(vT[5])}
    v_lshlrev_b32 {v(aPV)}, 3, {v(vT[4])}
    v_and_b32 {v(vT[4])}, 3, {v(vLane)}
    v_and_b32 {v(vT[5])}, 1, {v(vLane)}
    v_add_u32 {v(vT[5])}, 4, {v(vT[5])}
    v_bfe_u32 {v(vX)}, {v(vLane)}, 4, 1
    v_cmp_eq_u32 vcc, 1, {v(vX)}
    s_nop 1
    v_cndmask_b32 {v(vT[4])}, {v(vT[4])}, {v(vT[5])}, vcc
    v_lshl_add_u32 {v(aPV)}, {v(vT[4])}, 8, {v(aPV)}
    v_add_u32 {v(aPV)}, 1280, {v(aPV)}
    v_add_u32 {v(aPV)}, {s(sPB)}, {v(aPV)}
    v_lshrrev_b32 {v(vT[4])}, 4, {v(vLane)}
    v_lshlrev_b32 {v(vT[4])}, 14, {v(vT[4])}
    v_and_b32 {v(vT[5])}, 15, {v(vLane)}
    v_lshl_add_u32 {v(vS)}, {v(vT[5])}, 4, {v(vT[4])}
    v_mov_b32 {v(V)}, 0x3f80
    v_mov_b32 {v(V+1)}, 0
    v_lshlrev_b32 {v(vT[4])}, 3, {v(vLane)}
    v_add_u32 {v(vT[4])}, {s(sPB)}, {v(vT[4])}
    v_cmp_gt_u32 vcc, 32, {v(vLane)}
    s_and_saveexec_b64 {s(sMSK,2)}, vcc
    ds_write_b64 {v(vT[4])}, {v(V,2)} offset:2560
    s_mov_b64 exec, {s(sMSK,2)}""")
    def slow_load():
        k(f"s_add_u32 m0, {s(sPB)}, 0")
        k(f"s_add_u32 {s(sTMP)}, {s(sKV0)}, {s(sND)}")
        k(f"s_add_u32 {s(sTMP)}, {s(sTMP)}, {WS_K}")
        k(f"buffer_load_dwordx4 {v(vS)}, {s(sWS,4)}, {s(sTMP)} offen{SC1} lds")
        k(f"s_add_u32 m0, {s(sPB)}, 1280")
        k(f"s_add_u32 {s(sTMP2)}, {s(sTMP)}, {PART}")
        k(f"buffer_load_dwordx4 {v(vS)}, {s(sWS,4)}, {s(sTMP2)} offen{SC1} lds")
        k(f"s_mov_b64 {s(sMSK,2)}, exec")
        k(f"s_mov_b64 exec, 0xffff")
        k(f"s_add_u32 m0, {s(sPB)}, 1024")
        k(f"s_add_u32 {s(sTMP)}, {s(sTMP)}, {4*GRP}")
        k(f"buffer_load_dwordx4 {v(vS)}, {s(sWS,4)}, {s(sTMP)} offen{SC1} lds")
        k(f"s_add_u32 m0, {s(sPB)}, {1280+1024}")
        k(f"s_add_u32 {s(sTMP2)}, {s(sTMP2)}, {4*GRP}")
        k(f"buffer_load_dwordx4 {v(vS)}, {s(sWS,4)}, {s(sTMP2)} offen{SC1} lds")
        k(f"s_mov_b64 exec, {s(sMSK,2)}")
        k(f"s_add_u32 {s(sND)}, {s(sND)}, 256")
        k("s_waitcnt vmcnt(0) lgkmcnt(0)")
        k(f"ds_read_b64 {v(K1,2)}, {v(aP1)}")
        k(f"ds_read_b64 {v(K1+2,2)}, {v(aP1)} offset:256")
        k(f"ds_read_b64 {v(K2,2)}, {v(aP2)}")
    vM = vT[3]
    k(f"""v_mov_b32 {v(vM)}, 0xff800000
    s_mov_b32 {s(sND)}, 0
    s_mov_b32 {s(sC)}, 0""")
    k.label("L_attn_maxpass")
    slow_load()
    k("s_waitcnt lgkmcnt(0)")
    qk1(SA, 0); qk2(SA, 0)
    k("s_nop 15")
    for i in range(8):
        k(f"v_max3_f32 {v(vM)}, {v(SA+2*i)}, {v(SA+2*i+1)}, {v(vM)}")
    k(f"""s_add_u32 {s(sC)}, {s(sC)}, 1
    s_cmp_lt_u32 {s(sC)}, 64
    s_cbranch_scc1 L_attn_maxpass
    v_mov_b32 {v(vX)}, {v(vM)}
    s_nop 1
    v_permlane32_swap_b32 {v(vX)}, {v(vM)}
    s_nop 1
    v_max_f32 {v(vM)}, {v(vM)}, {v(vX)}
    s_mov_b32 {s(sND)}, 0
    s_mov_b32 {s(sC)}, 0""")
    for i in range(16):
        k(f"v_sub_f32 {v(C+i)}, 0, {v(vM)}")
        k(f"v_mov_b32 {v(OO+i)}, 0")
    k.label("L_attn_slow2")
    slow_load()
    for q in range(4):
        k(f"ds_read_b64_tr_b16 {v(V+2*q,2)}, {v(aPV)} offset:{q*64}")
    k("s_waitcnt lgkmcnt(0)")
    qk1(SA, 0, v(C, 16)); qk2(SA, 0)
    k("s_nop 15")
    for i in range(16):
        k(f"v_exp_f32 {v(SA+i)}, {v(SA+i)}")
    k("s_nop 0")
    for p in range(8):
        k(f"v_cvt_pk_bf16_f32 {v(P[0]+p)}, {v(SA+2*p)}, {v(SA+2*p+1)}")
    k("s_nop 1")
    k(f"v_mfma_f32_32x32x16_bf16 {v(OO,16)}, {v(V,4)}, {v(P[0],4)}, {v(OO,16)}")
    k(f"v_mfma_f32_32x32x16_bf16 {v(OO,16)}, {v(V+4,4)}, {v(P[0]+4,4)}, {v(OO,16)}")
    k(f"""s_add_u32 {s(sC)}, {s(sC)}, 1
    s_cmp_lt_u32 {s(sC)}, 64
    s_cbranch_scc1 L_attn_slow2
    s_nop 15""")
    get_l()
    k.label("L_attn_fin")
    k(f"v_rcp_f32 {v(vL)}, {v(vL)}")
    vA, vB, vC2 = vT[2], vT[3], vT[4]
    PP = P[0]
    k(f"""v_and_b32 {v(vA)}, 15, {v(vLane)}
    v_lshlrev_b32 {v(vA)}, 4, {v(vA)}
    v_bfe_u32 {v(vB)}, {v(vLane)}, 4, 1
    v_mul_u32_u24 {v(vB)}, 20480, {v(vB)}
    v_add_u32 {v(vA)}, {v(vA)}, {v(vB)}
    s_mul_i32 {s(sTMP)}, {s(sT)}, {2*20480}
    s_add_u32 {s(sTMP)}, {s(sTMP)}, {WS_O}
    s_mul_i32 {s(sTMP2)}, {s(sHEAD)}, 5
    v_lshrrev_b32 {v(vB)}, 5, {v(vLane)}
    v_add_u32 {v(vB)}, {s(sTMP2)}, {v(vB)}""")
    for i in range(12):
        k(f"v_mul_f32 {v(OO+i)}, {v(OO+i)}, {v(vL)}")
    for i in range(3):
        k(f"""v_add_u32 {v(vC2)}, {2*i}, {v(vB)}
        v_lshrrev_b32 {v(vT[5])}, 3, {v(vC2)}
        v_lshlrev_b32 {v(vT[5])}, 10, {v(vT[5])}
        v_and_b32 {v(vX)}, 3, {v(vC2)}
        v_lshl_add_u32 {v(vT[5])}, {v(vX)}, 8, {v(vT[5])}
        v_bfe_u32 {v(vX)}, {v(vC2)}, 2, 1
        v_lshl_add_u32 {v(vT[5])}, {v(vX)}, 3, {v(vT[5])}
        v_add_u32 {v(vT[5])}, {v(vT[5])}, {v(vA)}
        v_cvt_pk_bf16_f32 {v(PP+2*i)}, {v(OO+4*i)}, {v(OO+4*i+1)}
        v_cvt_pk_bf16_f32 {v(PP+2*i+1)}, {v(OO+4*i+2)}, {v(OO+4*i+3)}""")
        if i == 2:
            k(f"""v_cmp_gt_u32 vcc, 32, {v(vLane)}
            v_mov_b32 {v(vX)}, 0x7fffffff
            s_nop 0
            v_cndmask_b32 {v(vT[5])}, {v(vX)}, {v(vT[5])}, vcc""")
        k(f"buffer_store_dwordx2 {v(PP+2*i,2)}, {v(vT[5])}, {s(sWS,4)}, {s(sTMP)} offen{SC1}")
    trace(k, opts, 19)
    k("s_waitcnt vmcnt(0)")
    k("s_barrier")
    trace(k, opts, 33)
    lab = k.newlabel("osig")
    k(f"s_cmp_lg_u32 {s(sW)}, 0")
    k(f"s_cbranch_scc1 {lab}")
    k(f"s_add_u32 {s(sTMP)}, {s(sQB)}, {CNT_O}")
    signal(k, sTMP, 1)
    k.label(lab)
    return R.hi, XCH + 8 * 3072
    if opts.get("stamp"):
        k("s_waitcnt vmcnt(0)")
        stamp(k, opts, 3)
        stamp_flush(k, opts, 4, sWS, sW, vT[0], vT[1], phase=2)
    return ATTN_LDS
```

```python
from asm import *
from layout import *
import sync
from sync import sWS, sW, vLane

PX, PW, PWO, PBQ, PBK, PBV, PSH, PHK, PD, POUT, PDBG, PWS = [64 + 2 * i for i in range(12)]
SC1 = " sc1"

def mk_srd(k, sr, ptr, nbytes):
    k(f"""s_mov_b32 {s(sr)}, {s(ptr)}
    s_and_b32 {s(sr+1)}, {s(ptr+1)}, 0xffff
    s_mov_b32 {s(sr+2)}, {nbytes}
    s_mov_b32 {s(sr+3)}, 0x20000""")

def div10(k, vq, vrow, vpc, vtmp):
    k(f"""v_mul_u32_u24 {v(vrow)}, 6554, {v(vq)}
    v_lshrrev_b32 {v(vrow)}, 16, {v(vrow)}
    v_mul_u32_u24 {v(vtmp)}, 10, {v(vrow)}
    v_sub_u32 {v(vpc)}, {v(vq)}, {v(vtmp)}""")

def stamp(k, opts, idx):
    if not opts.get("stamp"): return
    k(f"s_memrealtime {s(40+2*idx,2)}")
    k("s_waitcnt lgkmcnt(0)") if opts.get("stampwait", 1) else None
def stamp_flush(k, opts, n):
    if not opts.get("stamp"): return
    k("s_waitcnt lgkmcnt(0)")
    if opts.get("dbgstamp"):
        lab = k.newlabel("dbgst")
        k(f"""s_cmp_lg_u32 {s(sW)}, 0
        s_cbranch_scc1 {lab}
        s_cmp_eq_u32 s2, 0
        s_cselect_b32 s38, 0, 32
        s_cselect_b32 s39, 1, 0
        s_cmp_eq_u32 s2, 133
        s_cselect_b32 s39, 1, s39
        s_cmp_eq_u32 s39, 0
        s_cbranch_scc1 {lab}
        v_mov_b32 v2, s38""")
        for i in range(n):
            k(f"s_sub_u32 s39, {s(40+2*i)}, s40")
            k(f"v_mov_b32 v3, s39")
            k(f"global_store_dword v2, v3, s[84:85] offset:{4*i}")
            k("s_nop 1")
        k.label(lab)
        return
    k(f"""s_lshl_b32 s38, s2, 3
    s_add_u32 s38, s38, {s(sW)}
    s_lshl_b32 s38, s38, 6
    s_add_u32 s38, s38, {WS_STAMP}
    v_mov_b32 v2, 0""")
    for i in range(n):
        k(f"v_mov_b32 v3, {s(40+2*i)}")
        k(f"buffer_store_dword v3, v2, {s(sWS,4)}, s38 offen offset:{4*i}")
        k("s_nop 1")
    k("v_mov_b32 v3, 0x12345678")
    k(f"buffer_store_dword v3, v2, {s(sWS,4)}, s38 offen offset:60")

def trace(k, opts, idx, sidx=None):
    if not opts.get("trace"): return
    k("s_memtime s[96:97]")
    k("s_waitcnt lgkmcnt(0)")
    if sidx is None:
        k(f"v_writelane_b32 v255, s96, {idx}")
    else:
        k(f"s_add_u32 s98, {s(sidx)}, {idx}") if False else None
        k(f"s_mov_b32 m0, {s(sidx)}") if False else None
        k(f"s_mov_b32 s98, m0")
        k(f"s_mov_b32 m0, {s(sidx)}")
        k(f"s_nop 3")
        k(f"v_writelane_b32 v255, s96, m0")
        k(f"s_mov_b32 m0, s98")
def trace_flush(k, opts):
    if not opts.get("trace"): return
    k(f"""s_lshl_b32 s38, s2, 3
    s_add_u32 s38, s38, {s(sW)}
    s_lshl_b32 s38, s38, 8
    s_add_u32 s38, s38, {WS_STAMP + 0x100000}
    v_lshlrev_b32 v2, 2, {v(vLane)}
    buffer_store_dword v255, v2, {s(sWS,4)}, s38 offen""")
```

```python
from f_common import *
from sync import *

CONV0 = 102400
HPAD = 64
HC0 = 0
HC1 = 4480
UC0 = 8960
UC1 = UC0 + 4608 + 32
CHSZ = (UC1 + 4608 + 255) // 256 * 256
CONV_END = CONV0 + 3 * CHSZ
assert (HC1 - HC0) % 256 == 128 and (UC1 - UC0) % 256 == 32

sCH, sLB, sPRE, sHOOK = 56, 57, 58, 59
sHS = 36
sX0, sX1, sX2 = 60, 61, 62
vPO, vPD = 175, 176

def conv_setup(k):
    k(f"""s_cmp_lt_u32 s2, 128
    s_cselect_b32 {s(sX0)}, 3, 2
    s_mul_i32 {s(sCH)}, s2, {s(sX0)}
    s_cselect_b32 {s(sX1)}, 0, 128
    s_add_u32 {s(sCH)}, {s(sCH)}, {s(sX1)}
    s_sub_u32 {s(sX1)}, {s(sW)}, 4
    s_add_u32 {s(sCH)}, {s(sCH)}, {s(sX1)}
    s_mul_i32 {s(sLB)}, {s(sX1)}, {CHSZ}
    s_add_u32 {s(sLB)}, {s(sLB)}, {CONV0}
    s_mov_b32 {s(sPRE)}, 0
    s_cmp_lt_u32 {s(sX1)}, {s(sX0)}
    s_cselect_b32 {s(sHOOK)}, 1, 0
    s_sub_u32 {s(sX2)}, {s(sCH)}, {s(sX1)}
    v_and_b32 {v(vPO)}, 1, {v(vLane)}
    v_mul_u32_u24 {v(vPO)}, 4, {v(vPO)}
    v_add_u32 {v(vPO)}, {s(sX2)}, {v(vPO)}
    v_max_i32 {v(vPO)}, 1, {v(vPO)}
    v_subrev_u32 {v(vPO)}, 1, {v(vPO)}
    v_min_u32 {v(vPO)}, 639, {v(vPO)}
    v_mul_u32_u24 {v(vPO)}, 52429, {v(vPO)}
    v_lshrrev_b32 {v(vPO)}, 22, {v(vPO)}
    v_add_u32 {v(vPO)}, {CNT_UR}, {v(vPO)}
    v_lshlrev_b32 {v(vPO)}, 8, {v(vPO)}""")

def h_dma(k, vD):
    mk_srd(k, sHS, PHK, D * S * 2)
    k(f"s_lshl_b32 {s(sX0)}, {s(sCH)}, 12")
    for c in range(2):
        for i in range(5):
            if i == 4: k("s_mov_b64 exec, 0xff")
            k(f"s_add_u32 m0, {s(sLB)}, {(HC0, HC1)[c] + HPAD + i*1024}")
            k(f"s_add_u32 {s(sX1)}, {s(sX0)}, {i*1024 + 4*c}")
            k(f"buffer_load_dwordx4 {v(vD)}, {s(sHS,4)}, {s(sX1)} offen lds")
            if i == 4: k("s_mov_b64 exec, -1")

def u_dma(k, vD):
    k(f"s_lshl_b32 {s(sX0)}, {s(sCH)}, 12")
    k(f"s_add_u32 {s(sX0)}, {s(sX0)}, {WS_UR}")
    for c in range(2):
        for i in range(5):
            if i == 4: k("s_mov_b64 exec, 1")
            k(f"s_add_u32 m0, {s(sLB)}, {(UC0, UC1)[c] + i*1024}")
            k(f"s_add_u32 {s(sX1)}, {s(sX0)}, {i*1024 - 2*(1+c)}") if i*1024 - 2*(1+c) >= 0 else k(f"s_sub_u32 {s(sX1)}, {s(sX0)}, {2*(1+c)}")
            k(f"buffer_load_dwordx4 {v(vD)}, {s(sWS,4)}, {s(sX1)} offen{SC1} lds")
            if i == 4: k("s_mov_b64 exec, -1")

URT = 32
FX = 178
def fixups(k):
    tz, t3, t4, t5, t6 = FX + 2, FX + 6, FX + 7, FX + 8, FX + 9
    assert tz % 4 == 0
    sH0, sDV, sEX = 34, 35, 36
    k(f"""s_lshl_b32 {s(sX0)}, {s(sCH)}, 12
    s_load_dword {s(sH0)}, {s(PHK,2)}, {s(sX0)}
    s_lshr_b32 {s(sX1)}, {s(sCH)}, 1
    s_lshl_b32 {s(sX1)}, {s(sX1)}, 2
    s_load_dword {s(sDV)}, {s(PD,2)}, {s(sX1)}""")
    for i in range(4): k(f"v_mov_b32 {v(tz+i)}, 0")
    k(f"""v_lshlrev_b32 {v(t4)}, 4, {v(vLane)}
    v_add_u32 {v(t4)}, {s(sLB)}, {v(t4)}
    v_mov_b32 {v(t5)}, {s(sLB)}
    v_lshlrev_b32 {v(t6)}, 1, {v(vLane)}
    v_add_u32 {v(t6)}, {s(sLB)}, {v(t6)}
    s_mov_b64 exec, 0xf""")
    k(f"ds_write_b128 {v(t4)}, {v(tz,4)} offset:{HC0}")
    k(f"ds_write_b128 {v(t4)}, {v(tz,4)} offset:{HC1}")
    k("s_mov_b64 exec, 0x7fffffff")
    k(f"ds_write_b128 {v(t4)}, {v(tz,4)} offset:{UC0 + 4112}")
    k(f"ds_write_b128 {v(t4)}, {v(tz,4)} offset:{UC1 + 4112}")
    k("s_mov_b64 exec, 0x7f")
    k(f"ds_write_b16 {v(t6)}, {v(tz)} offset:{UC0 + 2049*2}")
    k("s_mov_b64 exec, 0x3f")
    k(f"ds_write_b16 {v(t6)}, {v(tz)} offset:{UC1 + 2050*2}")
    k("s_mov_b64 exec, 1")
    k(f"ds_write_b16 {v(t5)}, {v(tz)} offset:{UC0}")
    k(f"ds_write_b32 {v(t5)}, {v(tz)} offset:{UC1}")
    k("s_mov_b64 exec, -1")
    k("s_waitcnt lgkmcnt(0)")
    k(f"""s_and_b32 {s(sX0)}, {s(sCH)}, 1
    s_lshl_b32 {s(sX0)}, {s(sX0)}, 4
    s_lshr_b32 {s(sDV)}, {s(sDV)}, {s(sX0)}
    s_lshl_b32 {s(sDV)}, {s(sDV)}, 16
    s_lshl_b32 {s(sX0)}, {s(sH0)}, 16
    v_mov_b32 {v(t3)}, {s(sX0)}
    v_add_f32 {v(t3)}, {s(sDV)}, {v(t3)}
    s_and_b32 {s(sX0)}, {s(sH0)}, 0xffff0000
    s_nop 0
    v_cvt_pk_bf16_f32 {v(t3)}, {v(t3)}, {v(t3)}
    v_and_b32 {v(t3)}, 0xffff, {v(t3)}
    v_or_b32 {v(t3)}, {s(sX0)}, {v(t3)}
    s_mov_b64 exec, 1""")
    k(f"ds_write_b32 {v(t5)}, {v(t3)} offset:{HC0 + HPAD}")
    k(f"ds_write_b32 {v(t5)}, {v(t3)} offset:{HC1 + HPAD - 4}")
    k("s_mov_b64 exec, -1")
    k("s_waitcnt lgkmcnt(0)")

def emit_hooks(k, vD, b1_stores, ret):
    sC = 19
    k.label("L_hook")
    l1, l2, l4, l5, l6 = [k.newlabel("hk") for _ in range(5)]
    k(f"s_cmp_eq_u32 {s(sC)}, 0"); k(f"s_cbranch_scc0 {l1}")
    b1_stores(k)
    k(f"s_branch {ret}")
    k.label(l1)
    k(f"s_cmp_eq_u32 {s(sC)}, 1"); k(f"s_cbranch_scc0 {l2}")
    k(f"s_lshr_b32 {s(sX0)}, s2, 5")
    k(f"s_add_u32 {s(sX0)}, {s(sX0)}, {CNT_UR}")
    signal(k, sX0, 1, v0=vPD, v1=vPD+1)
    k(f"s_branch {ret}")
    k.label(l2)
    k(f"s_cmp_eq_u32 {s(sC)}, 2"); k(f"s_cbranch_scc0 {l4}")
    h_dma(k, vD)
    k(f"s_branch {ret}")
    k.label(l4)
    k(f"s_cmp_eq_u32 {s(sC)}, 4"); k(f"s_cbranch_scc0 {l5}")
    k(f"s_mov_b32 {s(sX0)}, {WS_CNT}")
    k(f"buffer_load_dword {v(vPD)}, {v(vPO)}, {s(sWS,4)}, {s(sX0)} offen sc1")
    k(f"s_branch {ret}")
    k.label(l5)
    k(f"s_cmp_eq_u32 {s(sC)}, 5"); k(f"s_cbranch_scc0 {l6}")
    k(f"""v_cmp_le_u32 vcc, {URT - 64 if False else 0}, {v(vPD)}""") if False else None
    k(f"""s_movk_i32 {s(sX0)}, {URT}
    v_cmp_le_u32 vcc, {s(sX0)}, {v(vPD)}
    s_nop 1
    s_cmp_eq_u64 vcc, exec
    s_cbranch_scc0 {ret}
    s_mov_b32 {s(sPRE)}, 1""")
    u_dma(k, vD)
    k(f"s_branch {ret}")
    k.label(l6)
    k(f"s_cmp_eq_u32 {s(sPRE)}, 0")
    k(f"s_cbranch_scc1 {ret}")
    k("s_waitcnt lgkmcnt(0)")
    fixups(k)
    k(f"s_branch {ret}")

def emit_conv(k, opts):
    R = Regs(4)
    sT, sT2, sRHO, sH0, sDV, sIDX, sEX = 17, 18, 20, 22, 23, 24, 26
    vT = [R.alloc() for _ in range(8)]
    lab = k.newlabel("nopoll")
    k(f"s_cmp_eq_u32 {s(sW)}, 7")
    k(f"s_cbranch_scc0 {lab}")
    k(f"s_cmp_lg_u32 {s(sPRE)}, 0")
    k(f"s_cbranch_scc1 {lab}")
    wait_counters(k, vPO, URT)
    lds_flag_set(k, FLAG_UR)
    k("s_waitcnt lgkmcnt(0)")
    k.label(lab)
    k(f"s_bitcmp1_b32 {s(sHOOK)}, 0")
    k("s_cbranch_scc0 L_conv_end")
    k(f"""s_mul_i32 {s(sIDX)}, {s(sCH)}, 52429
    s_lshr_b32 {s(sIDX)}, {s(sIDX)}, 22""")
    vD = R.alloc()
    k(f"v_lshlrev_b32 {v(vD)}, 4, {v(vLane)}")
    trace(k, opts, 34)
    lds_flag_wait(k, FLAG_UR)
    u_dma(k, vD)
    k("s_waitcnt vmcnt(0)")
    fixups(k)
    trace(k, opts, 35)
    aH, aU = R.alloc(), R.alloc()
    k(f"""v_and_b32 {v(vT[0])}, 1, {v(vLane)}
    v_mul_u32_u24 {v(aH)}, {HC1 - HC0}, {v(vT[0])}
    v_bfe_u32 {v(vT[1])}, {v(vLane)}, 1, 3
    v_lshl_add_u32 {v(aH)}, {v(vT[1])}, 3, {v(aH)}
    v_lshrrev_b32 {v(vT[2])}, 4, {v(vLane)}
    v_lshl_add_u32 {v(aH)}, {v(vT[2])}, 4, {v(aH)}
    s_add_u32 {s(sT)}, {s(sLB)}, {HC0 + HPAD - 64}
    v_add_u32 {v(aH)}, {s(sT)}, {v(aH)}
    v_mul_u32_u24 {v(aU)}, {UC1 - UC0}, {v(vT[0])}
    v_lshl_add_u32 {v(aU)}, {v(vT[2])}, 4, {v(aU)}
    v_lshlrev_b32 {v(vT[1])}, 6, {v(vT[1])}
    v_sub_u32 {v(aU)}, {v(aU)}, {v(vT[1])}
    s_add_u32 {s(sT)}, {s(sLB)}, {UC0 + 2048*2 - 7*512 - 64}
    v_add_u32 {v(aU)}, {s(sT)}, {v(aU)}""")
    ACC = R.alloc(32, 4)
    HF = [R.alloc(32, 4), R.alloc(32, 4)]
    UF = [R.alloc(32, 4), R.alloc(32, 4)]
    for i in range(32):
        k(f"v_mov_b32 {v(ACC+i)}, 0")
    def rdH(f, ip):
        for r in range(2):
            k(f"ds_read_b64 {v(HF[f]+4*ip+2*r,2)}, {v(aH)} offset:{ip*512 + r*8}")
    def rdU(f, ii):
        k(f"ds_read_b128 {v(UF[f]+4*ii,4)}, {v(aU)} offset:{(7-ii)*512}")
    def mf(A, f, ip, ii):
        k(f"v_mfma_f32_16x16x32_bf16 {v(ACC+4*A,4)}, {v(HF[f]+4*ip,4)}, {v(UF[f]+4*ii,4)}, {v(ACC+4*A,4)}")
    def adv():
        k(f"v_add_u32 {v(aH)}, 64, {v(aH)}")
        k(f"v_add_u32 {v(aU)}, 64, {v(aU)}")
    trace(k, opts, 36)
    rdH(1, 0)
    for ii in range(8): rdU(1, ii)
    adv()
    k("s_waitcnt lgkmcnt(0)")
    for j in range(8):
        rdH(0, j); rdU(0, j)
        if j == 3: k("s_waitcnt lgkmcnt(0)")
    adv()
    for A in range(8): mf(A, 1, 0, A)
    k("s_waitcnt lgkmcnt(0)")
    k(f"s_mov_b32 {s(sRHO)}, 0")
    k.label("L_conv_loop")
    for f in range(2):
        rds = []
        for j in range(8):
            rds.append(("H", j, 0)); rds.append(("H", j, 1)); rds.append(("U", j, 0))
        pairs = [(A, ip) for ip in range(8) for A in range(ip, 8)]
        ri = 0
        for n, (A, ip) in enumerate(pairs):
            mf(A, f, ip, A - ip)
            if ri < len(rds) and n >= 2:
                t, j, r = rds[ri]; ri += 1
                if t == "H":
                    k(f"ds_read_b64 {v(HF[f^1]+4*j+2*r,2)}, {v(aH)} offset:{j*512 + r*8}")
                else:
                    rdU(f ^ 1, j)
        assert ri == len(rds)
        adv()
        k("s_waitcnt lgkmcnt(0)")
    k(f"""s_add_u32 {s(sRHO)}, {s(sRHO)}, 1
    s_cmp_lt_u32 {s(sRHO)}, 4
    s_cbranch_scc1 L_conv_loop""")
    trace(k, opts, 37)
    selA, selB, selX, vZ = vT[0], vT[1], vT[2], vT[3]
    k(f"""v_and_b32 {v(vT[4])}, 1, {v(vLane)}
    v_cmp_eq_u32 vcc, 1, {v(vT[4])}
    v_mov_b32 {v(vT[5])}, 0x03020100
    v_mov_b32 {v(vT[6])}, 0x07060504
    v_cndmask_b32 {v(selX)}, {v(vT[6])}, {v(vT[5])}, vcc
    v_mov_b32 {v(vT[5])}, 0x01000504
    v_mov_b32 {v(vT[6])}, 0x05040100
    v_cndmask_b32 {v(selA)}, {v(vT[5])}, {v(vT[6])}, vcc
    v_mov_b32 {v(vT[5])}, 0x03020706
    v_mov_b32 {v(vT[6])}, 0x07060302
    v_cndmask_b32 {v(selB)}, {v(vT[5])}, {v(vT[6])}, vcc
    v_bfe_u32 {v(vT[5])}, {v(vLane)}, 1, 3
    v_lshlrev_b32 {v(vZ)}, 6, {v(vT[5])}
    v_lshrrev_b32 {v(vT[5])}, 4, {v(vLane)}
    v_lshl_add_u32 {v(vZ)}, {v(vT[5])}, 4, {v(vZ)}
    v_lshl_add_u32 {v(vZ)}, {v(vT[4])}, 3, {v(vZ)}
    s_lshl_b32 {s(sT)}, {s(sCH)}, 12
    s_add_u32 {s(sT)}, {s(sT)}, {WS_Z}
    s_nop 3""")
    T0 = HF[0]
    for A in range(8):
        a, b, ra, rb, x, y = [T0 + 8*(A % 4) + i for i in range(6)]
        o = UF[0] + 2*A
        k(f"""v_cvt_pk_bf16_f32 {v(a)}, {v(ACC+4*A)}, {v(ACC+4*A+1)}
        v_cvt_pk_bf16_f32 {v(b)}, {v(ACC+4*A+2)}, {v(ACC+4*A+3)}
        s_nop 1
        v_mov_b32_dpp {v(ra)}, {v(a)} quad_perm:[1,0,3,2] row_mask:0xf bank_mask:0xf
        v_mov_b32_dpp {v(rb)}, {v(b)} quad_perm:[1,0,3,2] row_mask:0xf bank_mask:0xf
        v_perm_b32 {v(x)}, {v(a)}, {v(b)}, {v(selX)}
        v_perm_b32 {v(y)}, {v(ra)}, {v(rb)}, {v(selX)}
        v_perm_b32 {v(o)}, {v(x)}, {v(y)}, {v(selA)}
        v_perm_b32 {v(o+1)}, {v(x)}, {v(y)}, {v(selB)}""")
        k(f"buffer_store_dwordx2 {v(o,2)}, {v(vZ)}, {s(sWS,4)}, {s(sT)} offen offset:{A*512}{SC1}")
    trace(k, opts, 38)
    k.label("L_conv_end")
    return R.hi, CONV_END

def z_signal(k):
    lab = k.newlabel("zs")
    k(f"""s_cmp_lt_u32 {s(sW)}, 4
    s_cbranch_scc1 {lab}
    s_bitcmp1_b32 {s(sHOOK)}, 0
    s_cbranch_scc0 {lab}
    s_mul_i32 {s(sX0)}, {s(sCH)}, 52429
    s_lshr_b32 {s(sX0)}, {s(sX0)}, 22
    s_add_u32 {s(sX0)}, {s(sX0)}, {CNT_Z}""")
    signal(k, sX0, 1)
    k.label(lab)
```

```python
from f_common import *
from sync import *
import f_conv

XS = 16384
SLOTB = 32768
NSL = 4
KIMG = NSL * SLOTB
VIMG = KIMG + 11264
B1SCR = VIMG + 11264
P1_LDS = B1SCR + 10240
URT = 32

class Stream:
    def __init__(self): self.items = []
    def v(self, t):
        for ln in t.split("\n"):
            if ln.strip(): self.items.append(('v', ln.strip()))
    def l(self, t, tag): self.items.append(('l', t, tag))
    def w(self, tag): self.items.append(('w', tag))

def b1_front(k, vT, RB, sg):
    sK, sV, sSH, sTB, sCB, sT, sT2, sC0, sN0, sOB = sg
    mk_srd(k, sK, PBK, S * D * 2); mk_srd(k, sV, PBV, S * D * 2); mk_srd(k, sSH, PSH, D * 4 * 2)
    k(f"""s_lshl_b32 {s(sT)}, {s(sTB)}, 6
    s_sub_u32 {s(sT)}, {s(sT)}, 4
    s_mul_i32 {s(sT)}, {s(sT)}, 1280
    s_mul_i32 {s(sT2)}, {s(sCB)}, 160
    s_add_u32 {s(sOB)}, {s(sT)}, {s(sT2)}""")
    vA = RB.alloc()
    for i in range(2):
        k(f"""s_add_u32 {s(sT)}, {s(sW)}, {8*i}
        s_min_u32 {s(sT)}, {s(sT)}, 10
        s_lshl_b32 {s(sT2)}, {s(sT)}, 6
        v_add_u32 {v(vT[0])}, {s(sT2)}, {v(vLane)}""")
        div10(k, vT[0], vT[1], vT[2], vT[3])
        k(f"""v_mul_u32_u24 {v(vT[1])}, 1280, {v(vT[1])}
        v_lshl_add_u32 {v(vT[1])}, {v(vT[2])}, 4, {v(vT[1])}
        v_add_u32 {v(vA)}, {s(sOB)}, {v(vT[1])}
        s_lshl_b32 {s(sT)}, {s(sT)}, 10
        s_add_u32 m0, {s(sT)}, {KIMG}
        s_nop 0
        buffer_load_dwordx4 {v(vA)}, {s(sK,4)}, 0 offen lds
        s_add_u32 m0, {s(sT)}, {VIMG}
        s_nop 0
        buffer_load_dwordx4 {v(vA)}, {s(sV,4)}, 0 offen lds""")
    TAP = RB.alloc(4, 2)
    aT = [RB.alloc() for _ in range(2)]; aL = [RB.alloc() for _ in range(2)]
    gq, q4, ch16 = vT[4], vT[5], vT[6]
    k(f"""v_lshrrev_b32 {v(gq)}, 4, {v(vLane)}
    v_and_b32 {v(q4)}, 3, {v(vLane)}
    v_and_b32 {v(ch16)}, 15, {v(vLane)}""")
    for i in range(2):
        k(f"""s_add_u32 {s(sT)}, {s(sW)}, {8*i}
        s_min_u32 {s(sC0)}, {s(sT)}, 9
        s_lshl_b32 {s(sT2)}, {s(sC0)}, 10
        s_add_u32 {s(sT2)}, {s(sT2)}, {B1SCR}
        v_lshl_add_u32 {v(vT[0])}, {v(ch16)}, 2, {v(gq)}
        v_lshlrev_b32 {v(aL[i])}, 4, {v(vT[0])}
        v_add_u32 {v(aL[i])}, {s(sT2)}, {v(aL[i])}
        s_and_b32 {s(sN0)}, {s(sC0)}, 1
        s_lshl_b32 {s(sN0)}, {s(sN0)}, 2
        s_lshr_b32 {s(sC0)}, {s(sC0)}, 1
        s_lshl_b32 {s(sC0)}, {s(sC0)}, 4
        s_mul_i32 {s(sT)}, {s(sCB)}, 80
        s_add_u32 {s(sT)}, {s(sT)}, {s(sC0)}
        v_add_u32 {v(vT[0])}, {s(sT)}, {v(ch16)}
        v_lshlrev_b32 {v(vT[0])}, 3, {v(vT[0])}
        buffer_load_dwordx2 {v(TAP+2*i,2)}, {v(vT[0])}, {s(sSH,4)}, 0 offen
        v_add_u32 {v(vT[1])}, {s(sN0)}, {v(gq)}
        v_bfe_u32 {v(vT[0])}, {v(vLane)}, 2, 2
        v_lshl_add_u32 {v(vT[0])}, {v(vT[1])}, 3, {v(vT[0])}
        v_mul_u32_u24 {v(aT[i])}, 160, {v(vT[0])}
        v_lshl_add_u32 {v(aT[i])}, {v(q4)}, 3, {v(aT[i])}
        s_lshl_b32 {s(sC0)}, {s(sC0)}, 1
        s_add_u32 {s(sC0)}, {s(sC0)}, {KIMG}
        v_add_u32 {v(aT[i])}, {s(sC0)}, {v(aT[i])}""")
    return TAP, aT, aL

def b1_task(k, RB0, ctx, i):
    TAP, aT, aL = ctx
    RB = Regs(RB0)
    KQ = RB.alloc(6, 2); VQ = RB.alloc(4, 2)
    kk = RB.alloc(12); vv = RB.alloc(8); w = RB.alloc(4); u = RB.alloc(8)
    o = RB.alloc(4, 4)
    for qd in range(3):
        k(f"ds_read_b64_tr_b16 {v(KQ+2*qd,2)}, {v(aT[i])} offset:{qd*640}")
    for qd in range(2):
        k(f"ds_read_b64_tr_b16 {v(VQ+2*qd,2)}, {v(aT[i])} offset:{VIMG - KIMG + (qd+1)*640}")
    tp = TAP + 2*i
    k(f"""v_lshlrev_b32 {v(w)}, 16, {v(tp)}
    v_and_b32 {v(w+1)}, 0xffff0000, {v(tp)}
    v_lshlrev_b32 {v(w+2)}, 16, {v(tp+1)}
    v_and_b32 {v(w+3)}, 0xffff0000, {v(tp+1)}
    s_waitcnt lgkmcnt(2)""")
    for d in range(6):
        if d > 0: k(f"v_lshlrev_b32 {v(kk+2*d)}, 16, {v(KQ+d)}")
        k(f"v_and_b32 {v(kk+2*d+1)}, 0xffff0000, {v(KQ+d)}")
    for j in range(4, 12): k(f"v_mul_f32 {v(u+j-4)}, {v(w+3)}, {v(kk+j-3)}")
    for j in range(4, 12): k(f"v_fmac_f32 {v(u+j-4)}, {v(w+2)}, {v(kk+j-2)}")
    k("s_waitcnt lgkmcnt(0)")
    for j in range(4, 12):
        src = VQ + (j - 4) // 2
        k(f"v_and_b32 {v(vv+j-4)}, 0xffff0000, {v(src)}" if j & 1 else f"v_lshlrev_b32 {v(vv+j-4)}, 16, {v(src)}")
    for j in range(4, 12): k(f"v_fmac_f32 {v(u+j-4)}, {v(w+1)}, {v(kk+j-1)}")
    for j in range(4, 12): k(f"v_fmac_f32 {v(u+j-4)}, {v(w)}, {v(kk+j)}")
    for j in range(4, 12): k(f"v_mul_f32 {v(u+j-4)}, {v(u+j-4)}, {v(vv+j-4)}")
    U = lambda j: u + j - 4
    for d in range(4):
        k(f"v_cvt_pk_bf16_f32 {v(o+d)}, {v(U(11-2*d))}, {v(U(10-2*d))}")
    k(f"ds_write_b128 {v(aL[i])}, {v(o,4)}")
    return RB.hi

def b1_store_setup(k, vT, RB, sg):
    sTB, sCB, sT, sT2, sC0, sN0 = sg
    aS = [RB.alloc() for _ in range(3)]; aR = RB.alloc()
    q4, chq = vT[5], vT[7]
    k(f"v_lshrrev_b32 {v(chq)}, 2, {v(vLane)}")
    k(f"v_and_b32 {v(q4)}, 3, {v(vLane)}")
    for i in range(3):
        k(f"""s_add_u32 {s(sT)}, {s(sW)}, {4*i}
        s_min_u32 {s(sC0)}, {s(sT)}, 9
        s_and_b32 {s(sN0)}, {s(sC0)}, 1
        s_lshl_b32 {s(sN0)}, {s(sN0)}, 2
        s_lshr_b32 {s(sC0)}, {s(sC0)}, 1
        s_cmp_lt_u32 {s(sT)}, 10
        s_cselect_b32 {s(sT2)}, 0, 0x7ff00000
        s_lshl_b32 {s(sC0)}, {s(sC0)}, 4
        s_mul_i32 {s(sT)}, {s(sCB)}, 80
        s_add_u32 {s(sT)}, {s(sT)}, {s(sC0)}
        v_add_u32 {v(vT[0])}, {s(sT)}, {v(chq)}
        v_lshlrev_b32 {v(aS[i])}, 12, {v(vT[0])}
        v_add_u32 {v(vT[1])}, {s(sN0)}, {v(q4)}
        v_lshlrev_b32 {v(vT[1])}, 4, {v(vT[1])}
        v_sub_u32 {v(aS[i])}, {v(aS[i])}, {v(vT[1])}
        s_lshl_b32 {s(sC0)}, {s(sTB)}, 7
        s_sub_u32 {s(sC0)}, {WS_UR + 4080}, {s(sC0)}
        s_add_u32 {s(sC0)}, {s(sC0)}, {s(sT2)}
        v_add_u32 {v(aS[i])}, {s(sC0)}, {v(aS[i])}""")
    k(f"""s_lshl_b32 {s(sT)}, {s(sW)}, 10
    s_add_u32 {s(sT)}, {s(sT)}, {B1SCR}
    v_lshlrev_b32 {v(aR)}, 4, {v(vLane)}
    v_add_u32 {v(aR)}, {s(sT)}, {v(aR)}""")
    return aS, aR

class LdsQ:
    def __init__(self, k): self.k = k; self.q = []
    def op(self, text, tag): self.k(text); self.q.append(tag)
    def wait(self, tag):
        idx = [i for i, t in enumerate(self.q) if t == tag]
        if not idx: return
        n = len(self.q) - 1 - max(idx)
        assert n <= 15
        self.k(f"s_waitcnt lgkmcnt({n})")
        self.q = self.q[max(idx) + 1:]
    def wait_all(self):
        self.k("s_waitcnt lgkmcnt(0)"); self.q = []

def emit_p1(k, opts):
    UC = opts.get('uc', 3)
    R = Regs(4)
    sX, sWQ, sK, sV, sSH = 12, 16, 20, 24, 28
    sCT, sJ, sT, sT2, sC, sSC, sM0, sLW, sOB, sTB, sCB, sIDX = 32, 33, 34, 35, 36, 37, 40, 41, 42, 43, 44, 45
    if opts.get("stamp"): sM0, sLW, sOB, sTB, sCB, sIDX = 88, 89, 90, 91, 63, 62
    vT = [R.alloc() for _ in range(8)]
    k(f"""s_bfe_u32 {s(sJ)}, s2, 0x20001
    s_lshl_b32 {s(sJ)}, {s(sJ)}, 2
    s_bfe_u32 {s(sT)}, s2, 0x20003
    s_add_u32 {s(sJ)}, {s(sJ)}, {s(sT)}
    s_and_b32 {s(sCT)}, s2, 1
    s_lshl_b32 {s(sCT)}, {s(sCT)}, 3
    s_lshr_b32 {s(sT)}, s2, 5
    s_add_u32 {s(sCT)}, {s(sCT)}, {s(sT)}
    s_and_b32 {s(sTB)}, s2, 7
    s_lshl_b32 {s(sTB)}, {s(sTB)}, 2
    s_bfe_u32 {s(sT)}, s2, 0x20003
    s_add_u32 {s(sTB)}, {s(sTB)}, {s(sT)}
    s_lshr_b32 {s(sCB)}, s2, 5""")
    RF = Regs(128)
    ctx = b1_front(k, vT, RF, (sK, sV, sSH, sTB, sCB, sT, sT2, sC, sIDX, sOB))
    k(f"s_cmp_ge_u32 {s(sW)}, 4")
    k("s_cbranch_scc1 L_p1_loader")
    aX = [R.alloc(), R.alloc()]
    aW = [R.alloc(), R.alloc()]
    F = [dict(X=[R.alloc(4, 4), R.alloc(4, 4)], W=[R.alloc(4, 4), R.alloc(4, 4)]) for _ in range(3)]
    ACC = [[R.alloc(16, 4) for tt in range(2)] for nt in range(2)]
    RB = Regs(RF.hi)
    aS, aR = b1_store_setup(k, vT, RB, (sTB, sCB, sT, sT2, sC, sIDX))
    UO = RB.alloc(12, 4)
    vPF = RB.alloc(3)
    if opts.get("pf"):
        mk_srd(k, sX, PX, S * D * 2); mk_srd(k, sWQ, PW, D * 3 * D * 2)
        k(f"""s_lshr_b32 {s(sT)}, s2, 5
        s_mul_i32 {s(sT)}, {s(sT)}, 160
        s_mul_i32 {s(sT2)}, {s(sW)}, 40
        s_add_u32 {s(sT)}, {s(sT)}, {s(sT2)}
        v_add_u32 {v(vT[0])}, {s(sT)}, {v(vLane)}""")
        div10(k, vT[0], vT[1], vT[2], vT[3])
        k(f"""s_lshl_b32 {s(sT)}, {s(sJ)}, 7
        v_add_u32 {v(vT[1])}, {s(sT)}, {v(vT[1])}
        v_mul_u32_u24 {v(vT[1])}, 1280, {v(vT[1])}
        v_lshl_add_u32 {v(vT[1])}, {v(vT[2])}, 7, {v(vT[1])}
        s_mov_b32 exec_hi, 0xff
        buffer_load_dword {v(vPF)}, {v(vT[1])}, {s(sX,4)}, 0 offen
        s_mov_b64 exec, -1
        s_bfe_u32 {s(sT)}, s2, 0x20003
        s_mul_i32 {s(sT)}, {s(sT)}, 320
        s_mul_i32 {s(sT2)}, {s(sW)}, 80
        s_add_u32 {s(sT)}, {s(sT)}, {s(sT2)}
        v_add_u32 {v(vT[0])}, {s(sT)}, {v(vLane)}
        v_lshrrev_b32 {v(vT[1])}, 1, {v(vT[0])}
        v_mul_u32_u24 {v(vT[1])}, 3840, {v(vT[1])}
        v_and_b32 {v(vT[0])}, 1, {v(vT[0])}
        v_lshl_add_u32 {v(vT[1])}, {v(vT[0])}, 7, {v(vT[1])}
        s_lshl_b32 {s(sT)}, {s(sCT)}, 8
        buffer_load_dword {v(vPF+1)}, {v(vT[1])}, {s(sWQ,4)}, {s(sT)} offen
        s_add_u32 {s(sT)}, {s(sT)}, {32*3840}
        s_mov_b64 exec, 0xffff
        buffer_load_dword {v(vPF+2)}, {v(vT[1])}, {s(sWQ,4)}, {s(sT)} offen
        s_mov_b64 exec, -1""")
    k(f"""s_and_b32 {s(sT)}, {s(sW)}, 1
    s_lshl_b32 {s(sT)}, {s(sT)}, 13
    v_bfe_u32 {v(vT[0])}, {v(vLane)}, 2, 3
    v_lshlrev_b32 {v(vT[1])}, 10, {v(vT[0])}
    v_add_u32 {v(vT[1])}, {s(sT)}, {v(vT[1])}
    v_and_b32 {v(vT[0])}, 3, {v(vT[0])}
    v_and_b32 {v(vT[2])}, 3, {v(vLane)}
    v_xor_b32 {v(vT[0])}, {v(vT[0])}, {v(vT[2])}
    v_lshl_add_u32 {v(vT[1])}, {v(vT[0])}, 6, {v(vT[1])}
    v_lshrrev_b32 {v(vT[3])}, 5, {v(vLane)}
    v_xor_b32 {v(vT[3])}, {v(vT[3])}, {v(vT[2])}
    v_lshl_add_u32 {v(aX[0])}, {v(vT[3])}, 4, {v(vT[1])}
    v_xor_b32 {v(aX[1])}, 32, {v(aX[0])}""")
    k(f"""v_bfe_u32 {v(vT[0])}, {v(vLane)}, 2, 2
    v_lshrrev_b32 {v(vT[1])}, 5, {v(vLane)}
    v_lshlrev_b32 {v(vT[1])}, 3, {v(vT[1])}
    v_add_u32 {v(vT[1])}, {v(vT[1])}, {v(vT[0])}
    v_lshlrev_b32 {v(vT[1])}, 8, {v(vT[1])}
    v_add_u32 {v(vT[1])}, {XS}, {v(vT[1])}
    v_lshlrev_b32 {v(vT[0])}, 6, {v(vT[0])}
    v_bfe_u32 {v(vT[2])}, {v(vLane)}, 4, 1
    v_lshlrev_b32 {v(vT[2])}, 2, {v(vT[2])}
    v_and_b32 {v(vT[3])}, 3, {v(vLane)}
    v_add_u32 {v(vT[2])}, {v(vT[2])}, {v(vT[3])}
    s_lshr_b32 {s(sT)}, {s(sW)}, 1
    s_lshl_b32 {s(sT)}, {s(sT)}, 4
    v_add_u32 {v(vT[2])}, {s(sT)}, {v(vT[2])}""")
    for nt in range(2):
        k(f"""v_add_u32 {v(vT[3])}, {8*nt}, {v(vT[2])}
        v_lshlrev_b32 {v(vT[3])}, 3, {v(vT[3])}
        v_xor_b32 {v(vT[3])}, {v(vT[3])}, {v(vT[0])}
        v_add_u32 {v(aW[nt])}, {v(vT[3])}, {v(vT[1])}""")
    for nt in range(2):
        for tt in range(2):
            for i in range(16):
                k(f"v_mov_b32 {v(ACC[nt][tt]+i)}, 0")
    trace(k, opts, 0)
    k("s_waitcnt vmcnt(0)")
    k("s_barrier")
    trace(k, opts, 15)
    hiB = b1_task(k, RB.hi, ctx, 0)
    lab = k.newlabel("one")
    k(f"s_cmp_ge_u32 {s(sW)}, 2")
    k(f"s_cbranch_scc1 {lab}")
    b1_task(k, RB.hi, ctx, 1)
    k.label(lab)
    k("s_waitcnt lgkmcnt(0)")
    k("s_barrier")
    trace(k, opts, 1)
    stamp(k, opts, 1)
    for i in range(3):
        k(f"ds_read_b128 {v(UO+4*i,4)}, {v(aR)} offset:{min(i*4096, 4096*2)}")
    k(f"s_cmp_ge_u32 {s(sCT)}, 15")
    k("s_cbranch_scc1 L_p1_idle")
    Q = LdsQ(k)
    Q.q = [("u",)] * 3
    def rlist(f, ks, par):
        off = par * SLOTB
        L = []
        for tt in range(2):
            L.append(f"ds_read_b128 {v(F[f]['X'][tt],4)}, {v(aX[ks & 1])} offset:{off + tt*512 + (ks >> 1)*256}")
        for nt in range(2):
            for rd in range(2):
                L.append(f"ds_read_b64_tr_b16 {v(F[f]['W'][nt]+2*rd,2)}, {v(aW[nt])} offset:{off + (16*ks+4*rd)*256}")
        return [L[0], L[2], L[3], L[1], L[4], L[5]]
    ust = [f"buffer_store_dwordx4 {v(UO+4*i,4)}, {v(aS[i])}, {s(sWS,4)}, 0 offen{SC1}" for i in range(3)]
    side = []; per = 14; s0 = 99
    def take(nmax):
        n = 0
        while side and n < nmax:
            it = side[0]
            if it[0] == 'v': k(it[1])
            elif it[0] == 'l': Q.op(it[1], it[2])
            else:
                if it[1] in Q.q and len(Q.q) - 1 - max(i for i, t in enumerate(Q.q) if t == it[1]) < 4:
                    return
                Q.wait(it[1])
            side.pop(0); n += 1
    for x in rlist(0, 0, 0): Q.op(x, ("g", 0))
    for x in rlist(1, 1, 0): Q.op(x, ("g", 1))
    for n in range(40):
        c, ks = n // 4, n % 4
        f = n % 3
        nn = n + 2; c2, ks2 = nn // 4, nn % 4
        if ks == 2 and c < 9:
            Q.wait_all()
            if c == UC: k("s_waitcnt vmcnt(0)")
            if c & 1:
                for a_ in aX + aW:
                    k(f"v_xor_b32 {v(a_)}, {2*SLOTB}, {v(a_)}")
            k("s_barrier")
            trace(k, opts, 2 + c)
        else:
            Q.wait(("g", n))
        rl = rlist(nn % 3, ks2, c2 & 1) if c2 <= 9 else []
        ms = [f"v_mfma_f32_32x32x16_bf16 {v(ACC[nt][tt],16)}, {v(F[f]['W'][nt],4)}, {v(F[f]['X'][tt],4)}, {v(ACC[nt][tt],16)}" for nt in range(2) for tt in range(2)]
        on = n >= s0
        k(ms[0])
        if n in (1, 2, 3): k(ust[n - 1])
        for x in rl[0:3]: Q.op(x, ("g", nn))
        if on: take(per // 4)
        k(ms[1])
        for x in rl[3:6]: Q.op(x, ("g", nn))
        if on: take(per // 4)
        k(ms[2])
        if on: take(per // 4 + 1)
        k(ms[3])
        if on: take(per - 3 * (per // 4) - 1)
        if n == 29: assert not side, f"B1 stream not finished: {len(side)} left"
    stamp(k, opts, 2)
    trace(k, opts, 12)
    o16 = aX[0]
    k(f"""s_lshl_b32 {s(sOB)}, {s(sCT)}, 5
    s_lshr_b32 {s(sT)}, {s(sW)}, 1
    s_lshl_b32 {s(sT)}, {s(sT)}, 4
    s_add_u32 {s(sOB)}, {s(sOB)}, {s(sT)}
    s_lshl_b32 {s(sOB)}, {s(sOB)}, 14
    s_lshl_b32 {s(sT)}, {s(sJ)}, 10
    s_add_u32 {s(sOB)}, {s(sOB)}, {s(sT)}
    s_and_b32 {s(sT)}, {s(sW)}, 1
    s_lshl_b32 {s(sT)}, {s(sT)}, 9
    s_add_u32 {s(sOB)}, {s(sOB)}, {s(sT)}
    v_and_b32 {v(vT[0])}, 31, {v(vLane)}
    v_lshrrev_b32 {v(vT[1])}, 5, {v(vLane)}
    v_lshlrev_b32 {v(vT[1])}, 14, {v(vT[1])}
    v_lshl_add_u32 {v(o16)}, {v(vT[0])}, 4, {v(vT[1])}
    s_cmp_lt_u32 {s(sCT)}, 5
    s_cbranch_scc0 L_p1_noscale
    s_mov_b32 {s(sSC)}, {f32bits(QSCALE):#x}
    s_nop 7""")
    for nt in range(2):
        for tt in range(2):
            for i in range(16):
                k(f"v_mul_f32 {v(ACC[nt][tt]+i)}, {s(sSC)}, {v(ACC[nt][tt]+i)}")
    k.label("L_p1_noscale")
    k("s_nop 7")
    PK = F[0]['X'][0]
    for nt in range(2):
        for i in range(4):
            p = PK + (nt*4 + i) * 4
            for tt in range(2):
                A = ACC[nt][tt]
                k(f"v_cvt_pk_bf16_f32 {v(p+2*tt)}, {v(A+4*i)}, {v(A+4*i+1)}")
                k(f"v_cvt_pk_bf16_f32 {v(p+2*tt+1)}, {v(A+4*i+2)}, {v(A+4*i+3)}")
            k(f"s_add_u32 {s(sT)}, {s(sOB)}, {(8*nt+2*i)*GRP}")
            k(f"buffer_store_dwordx4 {v(p,4)}, {v(o16)}, {s(sWS,4)}, {s(sT)} offen{SC1}")
    trace(k, opts, 13)
    k("s_waitcnt vmcnt(0)")
    trace(k, opts, 14)
    signal(k, sCT, 1)
    k("s_branch L_p1_end")
    k.label("L_p1_idle")
    k("s_waitcnt lgkmcnt(0)")
    for x in ust: k(x)
    k("s_waitcnt vmcnt(0)")
    for i in range(9): k("s_barrier")
    sWO = sX
    mk_srd(k, sWO, PWO, D * D * 2)
    vP = [F[0]['X'][0] + i for i in range(5)]; aWr = F[0]['X'][0] + 5; vO8 = aWr + 1
    WFr = ACC[0][0]
    k(f"""s_bfe_u32 {s(sJ)}, s2, 0x40001
    s_lshr_b32 {s(sC)}, {s(sJ)}, 1
    s_and_b32 {s(sJ)}, {s(sJ)}, 1
    s_mul_i32 {s(sJ)}, {s(sJ)}, 10
    s_mul_i32 {s(sT2)}, {s(sC)}, 160""")
    for ph in range(5):
        k(f"v_add_u32 {v(vT[0])}, {64*ph}, {v(vLane)}")
        div10(k, vT[0], vT[1], vT[2], vT[3])
        k(f"""v_mul_u32_u24 {v(vP[ph])}, 1280, {v(vT[1])}
        v_lshl_add_u32 {v(vP[ph])}, {v(vT[2])}, 4, {v(vP[ph])}
        v_add_u32 {v(vP[ph])}, {s(sT2)}, {v(vP[ph])}""")
    k(f"""s_mul_i32 {s(sOB)}, {s(sW)}, 15360
    v_lshrrev_b32 {v(vT[0])}, 4, {v(vLane)}
    v_lshlrev_b32 {v(vT[0])}, 2, {v(vT[0])}
    v_bfe_u32 {v(vT[1])}, {v(vLane)}, 2, 2
    v_add_u32 {v(vT[0])}, {v(vT[0])}, {v(vT[1])}
    v_mul_u32_u24 {v(aWr)}, 160, {v(vT[0])}
    v_and_b32 {v(vT[1])}, 3, {v(vLane)}
    v_lshl_add_u32 {v(aWr)}, {v(vT[1])}, 3, {v(aWr)}
    v_add_u32 {v(aWr)}, {s(sOB)}, {v(aWr)}
    v_lshlrev_b32 {v(vO8)}, 4, {v(vLane)}""")
    for i in range(3):
        k(f"""s_add_u32 {s(sT)}, {s(sW)}, {4*i}
        s_min_u32 {s(sT)}, {s(sT)}, 9
        s_add_u32 {s(sT)}, {s(sT)}, {s(sJ)}
        s_mul_i32 {s(sT2)}, {s(sT)}, {32*1280}""")
        for ph in range(5):
            k(f"s_add_u32 m0, {s(sOB)}, {i*5120 + ph*1024}")
            k("s_nop 0")
            k(f"buffer_load_dwordx4 {v(vP[ph])}, {s(sWO,4)}, {s(sT2)} offen lds")
    k("s_waitcnt vmcnt(0)")
    for i in range(3):
        for nt in range(5):
            for r in range(2):
                k(f"ds_read_b64_tr_b16 {v(WFr+20*i+4*nt+2*r,2)}, {v(aWr)} offset:{i*5120 + r*2560 + nt*32}")
        k("s_waitcnt lgkmcnt(0)")
    for i in range(3):
        k(f"""s_add_u32 {s(sT)}, {s(sW)}, {4*i}
        s_min_u32 {s(sT)}, {s(sT)}, 9
        s_add_u32 {s(sT)}, {s(sT)}, {s(sJ)}
        s_mul_i32 {s(sT2)}, {s(sC)}, 20
        s_add_u32 {s(sT)}, {s(sT)}, {s(sT2)}
        s_mul_i32 {s(sT)}, {s(sT)}, 5120
        s_add_u32 {s(sT)}, {s(sT)}, {WS_WR}""")
        for nt in range(5):
            if nt == 4: k(f"s_add_u32 {s(sT)}, {s(sT)}, 4096")
            k(f"buffer_store_dwordx4 {v(WFr+20*i+4*nt,4)}, {v(vO8)}, {s(sWS,4)}, {s(sT)} offen offset:{(nt % 4)*1024}{SC1}")
    k("s_waitcnt vmcnt(0)")
    k(f"s_mov_b32 {s(sT)}, {CNT_W}")
    signal(k, sT, 1)
    k("s_branch L_p1_end")
    k.label("L_p1_loader")
    mk_srd(k, sX, PX, S * D * 2); mk_srd(k, sWQ, PW, D * 3 * D * 2)
    RL = Regs(12)
    vXo, vWo, vI, vI1 = RL.alloc(), RL.alloc(), RL.alloc(), RL.alloc()
    vA = [RL.alloc() for _ in range(3)]
    vD = RL.alloc()
    k(f"s_sub_u32 {s(sLW)}, {s(sW)}, 4")
    k(f"""s_cmp_ge_u32 {s(sCT)}, 15
    s_cselect_b32 {s(sSC)}, 0x7ff00000, 0""")
    k(f"""v_bfe_u32 {v(vT[0])}, {v(vLane)}, 2, 2
    v_xor_b32 {v(vT[0])}, {s(sLW)}, {v(vT[0])}
    v_and_b32 {v(vT[1])}, 3, {v(vLane)}
    v_xor_b32 {v(vT[1])}, {v(vT[1])}, {v(vT[0])}
    v_bfe_u32 {v(vT[2])}, {v(vLane)}, 4, 1
    v_lshl_add_u32 {v(vT[1])}, {v(vT[2])}, 2, {v(vT[1])}
    v_lshrrev_b32 {v(vT[2])}, 5, {v(vLane)}
    v_lshl_add_u32 {v(vT[2])}, {v(vT[0])}, 1, {v(vT[2])}
    s_lshl_b32 {s(sT2)}, {s(sJ)}, 7
    s_lshl_b32 {s(sC)}, {s(sLW)}, 3
    s_add_u32 {s(sT2)}, {s(sT2)}, {s(sC)}
    v_add_u32 {v(vT[2])}, {s(sT2)}, {v(vT[2])}
    v_mul_u32_u24 {v(vT[2])}, 1280, {v(vT[2])}
    v_lshl_add_u32 {v(vXo)}, {v(vT[1])}, 4, {v(vT[2])}
    v_add_u32 {v(vXo)}, {s(sSC)}, {v(vXo)}""")
    k(f"""v_lshrrev_b32 {v(vT[0])}, 4, {v(vLane)}
    v_and_b32 {v(vT[1])}, 15, {v(vLane)}
    v_lshlrev_b32 {v(vT[2])}, 2, {v(vT[0])}
    v_xor_b32 {v(vT[1])}, {v(vT[1])}, {v(vT[2])}
    v_lshlrev_b32 {v(vWo)}, 4, {v(vT[1])}
    s_lshl_b32 {s(sT2)}, {s(sCT)}, 8
    v_add_u32 {v(vWo)}, {s(sT2)}, {v(vWo)}
    s_lshl_b32 {s(sT2)}, {s(sLW)}, 2
    v_add_u32 {v(vT[0])}, {s(sT2)}, {v(vT[0])}
    v_mul_u32_u24 {v(vT[0])}, 3840, {v(vT[0])}
    v_add_u32 {v(vWo)}, {v(vWo)}, {v(vT[0])}
    v_add_u32 {v(vWo)}, {s(sSC)}, {v(vWo)}
    s_lshl_b32 {s(sM0)}, {s(sLW)}, 10""")
    ops = []
    def issue(c):
        sl = (c % NSL) * SLOTB
        lab = k.newlabel("noiss")
        k(f"s_cmp_ge_u32 {s(sCT)}, 15")
        k(f"s_cbranch_scc1 {lab}")
        _issue(c, sl)
        k.label(lab)
    def _issue(c, sl):
        for i in range(4):
            k(f"s_add_u32 m0, {s(sM0)}, {sl + i*4096}")
            k(f"s_mov_b32 {s(sT)}, {c*128 + i*40960}")
            k(f"buffer_load_dwordx4 {v(vXo)}, {s(sX,4)}, {s(sT)} offen lds")
            k(f"s_add_u32 m0, {s(sM0)}, {sl + XS + i*4096}")
            k(f"s_mov_b32 {s(sT)}, {(c*64 + i*16)*3840}")
            k(f"buffer_load_dwordx4 {v(vWo)}, {s(sWQ,4)}, {s(sT)} offen lds")
            ops.extend([("c", c)] * 2)
    def wait(tag):
        idx = [i for i, o in enumerate(ops) if o == tag]
        k(f"s_waitcnt vmcnt({len(ops) - 1 - max(idx)})")
        if tag[0] != "c":
            lab = k.newlabel("spw")
            k(f"s_cmp_ge_u32 {s(sCT)}, 15")
            k(f"s_cbranch_scc0 {lab}")
            k("s_waitcnt vmcnt(0)")
            k.label(lab)
    trace(k, opts, 0)
    ops.extend([("b",)] * 6)
    issue(0); issue(1)
    trace(k, opts, 1)
    wait(("b",))
    k("s_barrier")
    hiL = b1_task(k, RF.hi, ctx, 0)
    wait(("c", 0))
    k("s_waitcnt lgkmcnt(0)")
    trace(k, opts, 3)
    k("s_barrier")
    trace(k, opts, 4)
    issue(2)
    f_conv.conv_setup(k)
    k(f"v_lshlrev_b32 {v(vD)}, 4, {v(vLane)}")
    for c in range(9):
        wait(("c", c + 1))
        if c == UC:
            wait(("i",))
            lab2 = k.newlabel("initok")
            k(f"v_readfirstlane_b32 {s(sT)}, {v(vI)}")
            k(f"s_cmp_lg_u32 {s(sT)}, 0")
            k(f"s_cbranch_scc1 {lab2}")
            wait_init(k)
            k.label(lab2)
        k("s_barrier")
        if c == 0: issue(3)
        if c + 4 <= 9:
            issue(c + 4)
        if c == 0:
            lab = k.newlabel("lz")
            k(f"s_cmp_eq_u32 {s(sW)}, 7")
            k(f"s_cbranch_scc0 {lab}")
            lds_flags_zero(k)
            k.label(lab)
        if c == UC - 2:
            k(f"v_mov_b32 {v(vI1)}, 0")
            k(f"global_load_dword {v(vI)}, {v(vI1)}, {s(sDBG,2)} offset:128 sc1")
            ops.append(("i",))
        if c == UC:
            lab = k.newlabel("ursig")
            k(f"s_cmp_eq_u32 {s(sW)}, 7")
            k(f"s_cbranch_scc0 {lab}")
            k(f"s_add_u32 {s(sIDX)}, {s(sCB)}, {CNT_UR}")
            signal(k, sIDX, 1)
            k.label(lab)
        if c == 5:
            lab = k.newlabel("urp")
            k(f"s_cmp_eq_u32 {s(sW)}, 7")
            k(f"s_cbranch_scc0 {lab}")
            k(f"s_mov_b32 {s(sT)}, {WS_CNT}")
            k(f"buffer_load_dword {v(f_conv.vPD)}, {v(f_conv.vPO)}, {s(sWS,4)}, {s(sT)} offen sc1")
            k.label(lab)
        if c == 7:
            lab = k.newlabel("urq")
            k(f"s_cmp_eq_u32 {s(sW)}, 7")
            k(f"s_cbranch_scc0 {lab}")
            k("s_waitcnt vmcnt(0)")
            k(f"""s_movk_i32 {s(sT)}, {f_conv.URT}
            v_cmp_le_u32 vcc, {s(sT)}, {v(f_conv.vPD)}
            s_nop 1
            s_cmp_eq_u64 vcc, exec
            s_cbranch_scc0 {lab}
            s_mov_b32 {s(f_conv.sPRE)}, 1""")
            lds_flag_set(k, FLAG_UR)
            k("s_waitcnt lgkmcnt(0)")
            k.label(lab)
        if c == 7:
            lab = k.newlabel("noch")
            k(f"s_bitcmp1_b32 {s(f_conv.sHOOK)}, 0")
            k(f"s_cbranch_scc0 {lab}")
            f_conv.h_dma(k, vD)
            k.label(lab)
    trace(k, opts, 50)
    h = f_conv.emit_conv(k, opts)
    trace(k, opts, 51)
    k.label("L_p1_end")
    return max(R.hi, RB.hi, RL.hi, hiB, hiL, h[0]), max(P1_LDS, h[1])
```

```python
from f_common import *
from sync import *

WIMG = 20 * 5120
ZI = WIMG
QI = ZI + 10240
TSCR = QI + 10240
P3_LDS = TSCR + 10240

def emit_p3(k, opts):
    R = Regs(4)
    sWO, sOUT, sQ = 12, 16, 20
    sTB, sCB, sT, sT2, sLW, sB, sL, sN = 24, 25, 26, 27, 28, 29, 30, 31
    vT = [R.alloc() for _ in range(8)]
    k(f"s_cmp_ge_u32 {s(sW)}, 4")
    k("s_cbranch_scc1 L_p3_aux")
    def ids():
        k(f"""s_and_b32 {s(sTB)}, s2, 7
        s_lshl_b32 {s(sTB)}, {s(sTB)}, 2
        s_bfe_u32 {s(sT)}, s2, 0x20003
        s_add_u32 {s(sTB)}, {s(sTB)}, {s(sT)}
        s_lshr_b32 {s(sCB)}, s2, 5""")
        mk_srd(k, sOUT, POUT, S * 2 * D * 2)
    ids()
    OF = R.alloc(80, 4)
    WF = [R.alloc(20, 4) for _ in range(3)]
    ACC = R.alloc(20, 4)
    aW0, aW1, vO = R.alloc(), R.alloc(), R.alloc()
    k(f"""v_lshlrev_b32 {v(vO)}, 4, {v(vLane)}
    s_mul_i32 {s(sB)}, {s(sCB)}, 102400
    s_add_u32 {s(sB)}, {s(sB)}, {WS_WR}
    s_lshl_b32 {s(sL)}, {s(sW)}, 10
    s_add_u32 {s(sB)}, {s(sB)}, {s(sL)}""")
    for i in range(25):
        k(f"s_add_u32 m0, {s(sL)}, {i*4096}")
        k(f"s_add_u32 {s(sT)}, {s(sB)}, {i*4096}")
        k(f"buffer_load_dwordx4 {v(vO)}, {s(sWS,4)}, {s(sT)} offen{SC1} lds")
    k(f"""v_mov_b32 {v(aW0)}, {v(vO)}
    v_add_u32 {v(aW1)}, {50*1024}, {v(vO)}""")
    for i in range(20):
        k(f"v_mov_b32 {v(ACC+i)}, 0")
    vS = [R.alloc() for _ in range(3)]; aTW, aTR = R.alloc(), R.alloc()
    k(f"""s_lshl_b32 {s(sT)}, {s(sTB)}, 6
    s_lshl_b32 {s(sT2)}, {s(sW)}, 4
    s_add_u32 {s(sN)}, {s(sT)}, {s(sT2)}""")
    for i in range(3):
        k(f"v_add_u32 {v(vT[0])}, {64*i}, {v(vLane)}")
        div10(k, vT[0], vT[1], vT[2], vT[3])
        k(f"""v_add_u32 {v(vT[1])}, {s(sN)}, {v(vT[1])}
        v_mul_u32_u24 {v(vS[i])}, 2560, {v(vT[1])}
        v_lshl_add_u32 {v(vS[i])}, {v(vT[2])}, 4, {v(vS[i])}""")
    k(f"""s_mul_i32 {s(sT)}, {s(sW)}, 2560
    s_add_u32 {s(sT)}, {s(sT)}, {TSCR}
    v_and_b32 {v(vT[0])}, 15, {v(vLane)}
    v_mul_u32_u24 {v(aTW)}, 160, {v(vT[0])}
    v_lshrrev_b32 {v(vT[0])}, 4, {v(vLane)}
    v_lshl_add_u32 {v(aTW)}, {v(vT[0])}, 3, {v(aTW)}
    v_add_u32 {v(aTW)}, {s(sT)}, {v(aTW)}
    v_add_u32 {v(aTR)}, {s(sT)}, {v(vO)}""")
    k(f"""s_lshr_b32 {s(sT)}, {s(sTB)}, 2
    s_add_u32 {s(sT)}, {s(sT)}, {CNT_O}
    s_lshl_b32 {s(sT)}, {s(sT)}, 8
    v_mov_b32 {v(vT[0])}, {s(sT)}
    s_waitcnt vmcnt(0)""")
    lds_count_sync(k, FLAG_W, 4)
    trace(k, opts, 29)
    lab = k.newlabel("po"); lab2 = k.newlabel("po2")
    k(f"s_cmp_eq_u32 {s(sW)}, 0")
    k(f"s_cbranch_scc0 {lab}")
    wait_counters(k, vT[0], 32)
    lds_flag_set(k, FLAG_O)
    k(f"s_branch {lab2}")
    k.label(lab)
    lds_flag_wait(k, FLAG_O)
    k.label(lab2)
    stamp(k, opts, 6)
    trace(k, opts, 30)
    k(f"""s_lshl_b32 {s(sT)}, {s(sTB)}, 2
    s_add_u32 {s(sT)}, {s(sT)}, {s(sW)}
    s_mul_i32 {s(sT)}, {s(sT)}, 20480
    s_add_u32 {s(sT)}, {s(sT)}, {WS_O}""")
    for ks in range(20):
        if ks % 4 == 0 and ks > 0:
            k(f"s_add_u32 {s(sT)}, {s(sT)}, 4096")
        k(f"buffer_load_dwordx4 {v(OF+4*ks,4)}, {v(vO)}, {s(sWS,4)}, {s(sT)} offen offset:{(ks%4)*1024}{SC1}")
    def rl(ks):
        a = aW0 if ks < 10 else aW1
        return [f"ds_read_b128 {v(WF[ks % 3]+4*nt,4)}, {v(a)} offset:{((ks % 10)*5 + nt)*1024}" for nt in range(5)]
    k("s_waitcnt lgkmcnt(0)")
    for x in rl(0) + rl(1): k(x)
    for ks in range(20):
        k(f"s_waitcnt lgkmcnt({5 if ks < 19 else 0})" + (f" vmcnt({19 - ks})"))
        nx = rl(ks + 2) if ks + 2 < 20 else []
        for nt in range(5):
            k(f"v_mfma_f32_16x16x32_bf16 {v(ACC+4*nt,4)}, {v(WF[ks % 3]+4*nt,4)}, {v(OF+4*ks,4)}, {v(ACC+4*nt,4)}")
            if nx: k(nx[nt])
    trace(k, opts, 31)
    k(f"s_mul_i32 {s(sT)}, {s(sCB)}, 160")
    k("s_nop 7")
    P = WF[0]
    for nt in range(5):
        k(f"v_cvt_pk_bf16_f32 {v(P+2*nt)}, {v(ACC+4*nt)}, {v(ACC+4*nt+1)}")
        k(f"v_cvt_pk_bf16_f32 {v(P+2*nt+1)}, {v(ACC+4*nt+2)}, {v(ACC+4*nt+3)}")
        k(f"ds_write_b64 {v(aTW)}, {v(P+2*nt,2)} offset:{nt*32}")
    O2 = WF[1]
    for i in range(3):
        k(f"ds_read_b128 {v(O2+4*i,4)}, {v(aTR)} offset:{i*1024}")
    for i in range(3):
        k(f"s_waitcnt lgkmcnt({2-i})")
        if i == 2: k("s_mov_b64 exec, 0xffffffff")
        k(f"buffer_store_dwordx4 {v(O2+4*i,4)}, {v(vS[i])}, {s(sOUT,4)}, {s(sT)} offen")
    k("s_mov_b64 exec, -1")
    k("s_branch L_p3_end")
    k.label("L_p3_aux")
    ids()
    mk_srd(k, sQ, PBQ, S * D * 2)
    k(f"s_sub_u32 {s(sLW)}, {s(sW)}, 4")
    k(f"""s_mul_i32 {s(sL)}, {s(sLW)}, 5120
    s_add_u32 {s(sL)}, {s(sL)}, {ZI}
    s_lshl_b32 {s(sT)}, {s(sTB)}, 6
    s_lshl_b32 {s(sT2)}, {s(sLW)}, 4
    s_add_u32 {s(sB)}, {s(sT)}, {s(sT2)}""")
    vq = [OF, OF + 1, OF + 2]
    for i in range(3):
        k(f"v_add_u32 {v(vT[0])}, {64*i}, {v(vLane)}")
        div10(k, vT[0], vT[1], vT[2], vT[3])
        k(f"""v_add_u32 {v(vT[1])}, {s(sB)}, {v(vT[1])}
        v_mul_u32_u24 {v(vq[i])}, 1280, {v(vT[1])}
        v_lshl_add_u32 {v(vq[i])}, {v(vT[2])}, 4, {v(vq[i])}""")
    k(f"s_mul_i32 {s(sT)}, {s(sCB)}, 160")
    for i in range(3):
        if i == 2: k("s_mov_b64 exec, 0xffffffff")
        k(f"s_add_u32 m0, {s(sL)}, {2560 + i*1024}")
        k("s_nop 0")
        k(f"buffer_load_dwordx4 {v(vq[i])}, {s(sQ,4)}, {s(sT)} offen lds")
    k("s_mov_b64 exec, -1")
    k(f"""s_add_u32 {s(sT)}, {s(sCB)}, {CNT_Z}
    s_lshl_b32 {s(sT)}, {s(sT)}, 8
    v_mov_b32 {v(vT[0])}, {s(sT)}
    v_lshrrev_b32 {v(vT[6])}, 1, {v(vLane)}
    v_lshlrev_b32 {v(vT[6])}, 12, {v(vT[6])}
    v_and_b32 {v(vT[1])}, 1, {v(vLane)}
    v_lshl_add_u32 {v(vT[6])}, {v(vT[1])}, 4, {v(vT[6])}""")
    lab = k.newlabel("pz"); lab2 = k.newlabel("pz2")
    k(f"s_cmp_eq_u32 {s(sW)}, 7")
    k(f"s_cbranch_scc0 {lab}")
    wait_counters(k, vT[0], 80)
    lds_flag_set(k, FLAG_Z)
    k(f"s_branch {lab2}")
    k.label(lab)
    lds_flag_wait(k, FLAG_Z)
    k.label(lab2)
    trace(k, opts, 32)
    k(f"""s_mul_i32 {s(sT)}, {s(sCB)}, {80*4096}
    s_lshl_b32 {s(sT2)}, {s(sB)}, 1
    s_add_u32 {s(sT)}, {s(sT)}, {s(sT2)}
    s_add_u32 {s(sT)}, {s(sT)}, {WS_Z}""")
    for i in range(3):
        if i == 2: k("s_mov_b64 exec, 0xffffffff")
        k(f"s_add_u32 m0, {s(sL)}, {i*1024}")
        k(f"s_add_u32 {s(sT2)}, {s(sT)}, {i*32*4096}")
        k(f"buffer_load_dwordx4 {v(vT[6])}, {s(sWS,4)}, {s(sT2)} offen{SC1} lds")
    k("s_mov_b64 exec, -1")
    base = (OF + 8 + 3) // 4 * 4
    Z = [base, base + 4, base + 8]; Q = [base + 12, base + 16, base + 20]
    zf, qf, o = base + 24, base + 32, base + 40
    aZ, aQ, aO, oc = base + 44, base + 45, base + 46, base + 47
    k(f"""v_lshrrev_b32 {v(oc)}, 4, {v(vLane)}
    v_lshlrev_b32 {v(vT[1])}, 3, {v(oc)}
    v_bfe_u32 {v(vT[2])}, {v(vLane)}, 2, 2
    v_add_u32 {v(vT[1])}, {v(vT[1])}, {v(vT[2])}
    v_lshlrev_b32 {v(aZ)}, 5, {v(vT[1])}
    v_and_b32 {v(vT[2])}, 3, {v(vLane)}
    v_lshl_add_u32 {v(aZ)}, {v(vT[2])}, 3, {v(aZ)}
    v_add_u32 {v(aZ)}, {s(sL)}, {v(aZ)}
    v_and_b32 {v(vT[1])}, 15, {v(vLane)}
    v_mul_u32_u24 {v(aQ)}, 160, {v(vT[1])}
    v_lshl_add_u32 {v(aQ)}, {v(oc)}, 4, {v(aQ)}
    v_add_u32 {v(aQ)}, {s(sL)}, {v(aQ)}
    v_add_u32 {v(vT[1])}, {s(sB)}, {v(vT[1])}
    v_mul_u32_u24 {v(aO)}, 2560, {v(vT[1])}
    v_lshl_add_u32 {v(aO)}, {v(oc)}, 4, {v(aO)}
    s_mul_i32 {s(sT)}, {s(sCB)}, 160
    s_add_u32 {s(sT)}, {s(sT)}, 1280
    s_waitcnt vmcnt(0)""")
    for i in range(3):
        k(f"ds_read_b64_tr_b16 {v(Z[i],2)}, {v(aZ)} offset:{i*1024}")
        k(f"ds_read_b64_tr_b16 {v(Z[i]+2,2)}, {v(aZ)} offset:{i*1024 + 128}")
        k(f"ds_read_b128 {v(Q[i],4)}, {v(aQ)} offset:{2560 + i*64}")
    for i in range(3):
        k(f"s_waitcnt lgkmcnt({3*(2-i)})")
        for d in range(4):
            k(f"v_lshlrev_b32 {v(zf+2*d)}, 16, {v(Z[i]+d)}")
            k(f"v_and_b32 {v(zf+2*d+1)}, 0xffff0000, {v(Z[i]+d)}")
            k(f"v_lshlrev_b32 {v(qf+2*d)}, 16, {v(Q[i]+d)}")
            k(f"v_and_b32 {v(qf+2*d+1)}, 0xffff0000, {v(Q[i]+d)}")
        for e in range(8):
            k(f"v_mul_f32 {v(zf+e)}, {v(zf+e)}, {v(qf+e)}")
        for d in range(4):
            k(f"v_cvt_pk_bf16_f32 {v(Z[i]+d)}, {v(zf+2*d)}, {v(zf+2*d+1)}")
        if i == 2: k("s_mov_b64 exec, 0xffffffff")
        k(f"buffer_store_dwordx4 {v(Z[i],4)}, {v(aO)}, {s(sOUT,4)}, {s(sT)} offen offset:{i*64}")
    k("s_mov_b64 exec, -1")
    trace(k, opts, 39)
    k.label("L_p3_end")
    return R.hi, P3_LDS
```

```python
from asm import *
from layout import *

sWS = 4
sW = 8
sDBG = 84
sSY0, sSY1 = 92, 93
sSYM = 94
vLane = 1
vSY0, vSY1 = 2, 3

WS_CNT = 0x3000000
CNT_STRIDE = 256
CNT_QKV = 0
CNT_W = 15
CNT_UR = 16
CNT_Z = 24
CNT_O = 32
NCNT = 40
def cnt_off(i): return WS_CNT + i * CNT_STRIDE
SPIN_MAX = 1 << 22

def init_counters(k):
    lab = k.newlabel("noinit")
    k(f"""s_xor_b32 {s(sSY0)}, s2, 225
    s_or_b32 {s(sSY0)}, {s(sSY0)}, {s(sW)}
    s_cmp_lg_u32 {s(sSY0)}, 0
    s_cbranch_scc1 {lab}
    v_lshlrev_b32 {v(vSY0)}, 8, {v(vLane)}
    v_mov_b32 {v(vSY1)}, 0
    s_mov_b32 {s(sSY0)}, {WS_CNT}
    buffer_store_dword {v(vSY1)}, {v(vSY0)}, {s(sWS,4)}, {s(sSY0)} offen sc1
    s_waitcnt vmcnt(0)
    v_mov_b32 {v(vSY0)}, 0
    v_mov_b32 {v(vSY1)}, 1
    global_store_dword {v(vSY0)}, {v(vSY1)}, {s(sDBG,2)} offset:128 sc1
    s_waitcnt vmcnt(0)""")
    k.label(lab)

def wait_init(k):
    l0 = k.newlabel("winit"); l1 = k.newlabel("winitd")
    k(f"s_mov_b32 {s(sSY0)}, 0")
    k(f"v_mov_b32 {v(vSY0)}, 0")
    k.label(l0)
    k(f"""global_load_dword {v(vSY1)}, {v(vSY0)}, {s(sDBG,2)} offset:128 sc1
    s_waitcnt vmcnt(0)
    v_readfirstlane_b32 {s(sSY1)}, {v(vSY1)}
    s_add_u32 {s(sSY0)}, {s(sSY0)}, 1
    s_cmp_lg_u32 {s(sSY1)}, 0
    s_cbranch_scc1 {l1}
    s_sleep 2
    s_cmp_lt_u32 {s(sSY0)}, {SPIN_MAX}
    s_cbranch_scc1 {l0}""")
    k.label(l1)

def signal(k, s_idx, amount, v0=None, v1=None):
    vSY0 = v0 if v0 is not None else globals()["vSY0"]
    vSY1 = v1 if v1 is not None else globals()["vSY1"]
    k(f"""s_lshl_b32 {s(sSY0)}, {s(s_idx)}, 8
    s_add_u32 {s(sSY0)}, {s(sSY0)}, {WS_CNT}
    v_mov_b32 {v(vSY0)}, 0
    v_mov_b32 {v(vSY1)}, {amount}
    s_mov_b64 {s(sSYM,2)}, exec
    s_mov_b64 exec, 1
    buffer_atomic_add {v(vSY1)}, {v(vSY0)}, {s(sWS,4)}, {s(sSY0)} offen
    s_mov_b64 exec, {s(sSYM,2)}""")

def wait_counters(k, voff, target):
    l0 = k.newlabel("wcnt"); l1 = k.newlabel("wcntd")
    k(f"s_mov_b32 {s(sSY0)}, 0")
    k(f"s_mov_b32 {s(sSY1)}, {WS_CNT}")
    k.label(l0)
    k(f"""buffer_load_dword {v(vSY1)}, {v(voff)}, {s(sWS,4)}, {s(sSY1)} offen sc1
    s_add_u32 {s(sSY0)}, {s(sSY0)}, 1
    s_waitcnt vmcnt(0)
    v_cmp_le_u32 vcc, {target}, {v(vSY1)}
    s_nop 1
    s_cmp_eq_u64 vcc, exec
    s_cbranch_scc1 {l1}
    s_sleep 3
    s_cmp_lt_u32 {s(sSY0)}, {SPIN_MAX}
    s_cbranch_scc1 {l0}""")
    k.label(l1)

LFLAG = 163776
FLAG_UR, FLAG_O, FLAG_Z, FLAG_W = 0, 1, 2, 3
def lds_flags_zero(k):
    k(f"""v_mov_b32 {v(vSY0)}, {LFLAG}
    v_mov_b32 {v(vSY1)}, 0
    ds_write_b32 {v(vSY0)}, {v(vSY1)}
    ds_write_b32 {v(vSY0)}, {v(vSY1)} offset:4
    ds_write_b32 {v(vSY0)}, {v(vSY1)} offset:8
    ds_write_b32 {v(vSY0)}, {v(vSY1)} offset:12
    s_waitcnt lgkmcnt(0)""")
def lds_flag_set(k, f):
    k(f"""v_mov_b32 {v(vSY0)}, {LFLAG}
    v_mov_b32 {v(vSY1)}, 1
    ds_write_b32 {v(vSY0)}, {v(vSY1)} offset:{4*f}""")
def lds_flag_wait(k, f):
    l0 = k.newlabel("lw"); l1 = k.newlabel("lwd")
    k(f"v_mov_b32 {v(vSY0)}, {LFLAG}")
    k(f"s_mov_b32 {s(sSY0)}, 0")
    k.label(l0)
    k(f"""ds_read_b32 {v(vSY1)}, {v(vSY0)} offset:{4*f}
    s_add_u32 {s(sSY0)}, {s(sSY0)}, 1
    s_waitcnt lgkmcnt(0)
    v_readfirstlane_b32 {s(sSY1)}, {v(vSY1)}
    s_cmp_lg_u32 {s(sSY1)}, 0
    s_cbranch_scc1 {l1}
    s_sleep 1
    s_cmp_lt_u32 {s(sSY0)}, {SPIN_MAX * 16}
    s_cbranch_scc1 {l0}""")
    k.label(l1)

def lds_count_sync(k, f, n):
    l0 = k.newlabel("lc"); l1 = k.newlabel("lcd")
    k(f"""v_mov_b32 {v(vSY0)}, {LFLAG}
    v_mov_b32 {v(vSY1)}, 1
    s_mov_b64 {s(sSYM,2)}, exec
    s_mov_b64 exec, 1
    ds_add_u32 {v(vSY0)}, {v(vSY1)} offset:{4*f}
    s_mov_b64 exec, {s(sSYM,2)}
    s_mov_b32 {s(sSY0)}, 0""")
    k.label(l0)
    k(f"""ds_read_b32 {v(vSY1)}, {v(vSY0)} offset:{4*f}
    s_add_u32 {s(sSY0)}, {s(sSY0)}, 1
    s_waitcnt lgkmcnt(0)
    v_readfirstlane_b32 {s(sSY1)}, {v(vSY1)}
    s_cmp_ge_u32 {s(sSY1)}, {n}
    s_cbranch_scc1 {l1}
    s_cmp_lt_u32 {s(sSY0)}, {SPIN_MAX * 16}
    s_cbranch_scc1 {l0}""")
    k.label(l1)
```

```python
import sys
from f_common import *
from sync import *
import f_p1, f_conv, f_attn, f_p3
NAME = "concat_heads__softmax_full_mha__ssm_conv_h3__prompt_kernel"
HEADER = """; Kernarg layout (96 bytes, pointers only): A_x, A_wqkv, A_wo, B_q, B_k, B_v, B_shift_k, B_ssm_k, B_ssm_D, d_out, d_debug, d_ws
; @launch grid=(256,1,1) block=(512,1,1) lds=163840
"""
def build(opts=None):
    opts = opts or {}
    k = Asm()
    k.lines.append(entry(NAME))
    k("s_cmp_ge_u32 s2, 256")
    k("s_cbranch_scc1 L_exit")
    k("s_load_dwordx16 s[64:79], s[0:1], 0")
    k("s_load_dwordx8 s[80:87], s[0:1], 64")
    k(f"v_and_b32 {v(vLane)}, 63, v0")
    k("v_lshrrev_b32 v2, 6, v0")
    k("s_nop 0")
    k(f"v_readfirstlane_b32 {s(sW)}, v2")
    if opts.get("trace"): k("v_mov_b32 v255, 0")
    stamp(k, opts, 0)
    k("s_waitcnt lgkmcnt(0)")
    mk_srd(k, sWS, PWS, WS_BYTES)
    init_counters(k)
    hs = []
    hs.append(f_p1.emit_p1(k, opts))
    stamp(k, opts, 3)
    T = f_p3.Tail(opts)
    hs.append(f_attn.emit_attn(k, opts, T.post_a, T.post_b))
    hs.append(f_p3.emit_p3(k, opts, T))
    if opts.get("trace"):
        k("s_waitcnt vmcnt(0)")
        trace(k, opts, 53)
    trace_flush(k, opts)
    if opts.get("stamp"):
        k("s_waitcnt vmcnt(0)")
        stamp(k, opts, 7)
        stamp_flush(k, opts, 8)
    k.label("L_exit")
    k("s_endpgm")
    nv = max(h[0] for h in hs); lds = max(h[1] for h in hs)
    assert lds <= 163840
    src = HEADER + '.amdgcn_target "amdgcn-amd-amdhsa--gfx950"\n.text\n' + k.text() + kd(NAME, 256 if opts.get('trace') else nv, ns=102 if opts.get('trace') else 96)
    return src, [NAME], [163840]
if __name__ == "__main__":
    src, names, lds = build()
    out = sys.argv[1] if len(sys.argv) > 1 else "concat_heads__softmax_full_mha__ssm_conv_h3__prompt.s"
    open(out, "w").write(src)
    print(names, lds, len(src))
```

```python
from f_common import *
from sync import *
import f_conv

GS = 1024 + 32
HALF = 11 * GS
SLOT = 2 * HALF
NSLOT = 4
XCH = 102400
PRIV = XCH
PRIVSZ = 3072
ATTN_LDS = XCH + 8 * 3072

def emit_attn(k, opts, post_a, post_b):
    R = Regs(4)
    sHEAD, sT, sC, sSLOT, sTMP, sTMP2, sKH, sQG, sQB = 12, 18, 19, 13, 14, 15, 16, 17, 33
    sMSK = 20; sMSK2 = 22
    sSRC = [24, 25, 26]; sDST = [27, 28, 29]; sDO = 30; sKV0 = 31; sND = 32
    aK1c, aK2c, aVc, aK1n = [R.alloc() for _ in range(4)]
    aO = [R.alloc() for _ in range(3)]
    lK1, lK2, lV, vDMA = [R.alloc() for _ in range(4)]
    vT = [R.alloc() for _ in range(6)]
    Q1 = [R.alloc(4, 4), R.alloc(4, 4)]
    K1 = R.alloc(4, 4)
    Q2 = [R.alloc(2, 2), R.alloc(2, 2)]
    K2 = R.alloc(2, 2)
    V = R.alloc(8, 4)
    P = [R.alloc(8, 4), R.alloc(8, 4)]
    SS = [[R.alloc(16, 4), R.alloc(16, 4)], [R.alloc(16, 4), R.alloc(16, 4)]]
    O = [R.alloc(16, 4), R.alloc(16, 4)]

    k(f"""s_and_b32 {s(sHEAD)}, s2, 7
    s_lshl_b32 {s(sHEAD)}, {s(sHEAD)}, 2
    s_bfe_u32 {s(sTMP)}, s2, 0x20003
    s_add_u32 {s(sHEAD)}, {s(sHEAD)}, {s(sTMP)}
    s_lshr_b32 {s(sQB)}, s2, 5
    s_lshl_b32 {s(sT)}, {s(sQB)}, 3
    s_and_b32 {s(sQG)}, {s(sW)}, 3
    s_lshr_b32 {s(sKH)}, {s(sW)}, 2
    s_lshl_b32 {s(sTMP)}, {s(sQG)}, 1
    s_add_u32 {s(sT)}, {s(sT)}, {s(sTMP)}
    v_lshlrev_b32 {v(vDMA)}, 4, {v(vLane)}
    v_and_b32 {v(vT[0])}, 31, {v(vLane)}
    v_lshlrev_b32 {v(lK2)}, 3, {v(vT[0])}
    v_lshrrev_b32 {v(vT[1])}, 5, {v(vLane)}""")
    vQ = vT[2]
    k(f"""v_lshlrev_b32 {v(vQ)}, 15, {v(vT[1])}
    v_add_u32 {v(vQ)}, {v(vQ)}, {v(lK2)}
    s_mul_i32 {s(sKV0)}, {s(sHEAD)}, {5*GRP}
    s_lshl_b32 {s(sTMP)}, {s(sT)}, 8
    s_add_u32 {s(sTMP)}, {s(sTMP)}, {s(sKV0)}
    s_add_u32 {s(sTMP2)}, {s(sTMP)}, {GRP}""")
    for i in range(3):
        k(f"""s_add_u32 {s(sDST[i])}, {s(sW)}, {8*i}
        s_cmp_ge_u32 {s(sDST[i])}, 10
        s_cselect_b32 {s(sSRC[i])}, 1, 0
        s_mul_i32 {s(sND)}, {s(sSRC[i])}, 10
        s_sub_u32 {s(sDST[i])}, {s(sDST[i])}, {s(sND)}
        s_mul_i32 {s(sND)}, {s(sSRC[i])}, {HALF}
        s_lshl_b32 {s(sSRC[i])}, {s(sSRC[i])}, 13
        s_add_u32 {s(sSRC[i])}, {s(sSRC[i])}, {s(sKV0)}
        s_add_u32 {s(sSRC[i])}, {s(sSRC[i])}, {WS_K}
        s_cmp_ge_u32 {s(sDST[i])}, 5
        s_cselect_b32 {s(sDO)}, {PART - 5*GRP}, 0
        s_add_u32 {s(sSRC[i])}, {s(sSRC[i])}, {s(sDO)}
        s_lshl_b32 {s(sDO)}, {s(sDST[i])}, 14
        s_add_u32 {s(sSRC[i])}, {s(sSRC[i])}, {s(sDO)}
        s_mul_i32 {s(sDST[i])}, {s(sDST[i])}, {GS}
        s_add_u32 {s(sDST[i])}, {s(sDST[i])}, {s(sND)}""")
    lab = k.newlabel("nopoll")
    k(f"""s_cmp_lg_u32 {s(sW)}, 0
    s_cbranch_scc1 {lab}
    v_min_u32 {v(vT[3])}, 5, {v(vLane)}
    v_and_b32 {v(vT[4])}, 1, {v(vT[3])}
    v_lshlrev_b32 {v(vT[4])}, 2, {v(vT[4])}
    s_mul_i32 {s(sND)}, {s(sHEAD)}, 5
    v_add_u32 {v(vT[4])}, {s(sND)}, {v(vT[4])}
    v_lshrrev_b32 {v(vT[4])}, 5, {v(vT[4])}
    v_lshrrev_b32 {v(vT[3])}, 1, {v(vT[3])}
    v_mul_u32_u24 {v(vT[3])}, 5, {v(vT[3])}
    v_add_u32 {v(vT[3])}, {v(vT[3])}, {v(vT[4])}
    v_cmp_gt_u32 vcc, 6, {v(vLane)}
    s_nop 1
    v_cndmask_b32 {v(vT[3])}, {CNT_W}, {v(vT[3])}, vcc
    v_lshlrev_b32 {v(vT[3])}, 8, {v(vT[3])}""")
    wait_counters(k, vT[3], 64)
    k.label(lab)
    k("s_barrier")
    trace(k, opts, 16)
    stamp(k, opts, 4)
    for t in range(2):
        k(f"buffer_load_dwordx2 {v(Q1[t],2)}, {v(vQ)}, {s(sWS,4)}, {s(sTMP)} offen offset:{t*256}{SC1}")
        k(f"buffer_load_dwordx2 {v(Q1[t]+2,2)}, {v(vQ)}, {s(sWS,4)}, {s(sTMP2)} offen offset:{t*256}{SC1}")
    k(f"s_add_u32 {s(sTMP)}, {s(sTMP)}, {4*GRP}")
    for t in range(2):
        k(f"buffer_load_dwordx2 {v(Q2[t],2)}, {v(lK2)}, {s(sWS,4)}, {s(sTMP)} offen offset:{t*256}{SC1}")
    def dma_piece(i, slot_const=None):
        lab = None
        if slot_const is None:
            k(f"s_add_u32 m0, {s(sDST[i])}, {s(sSLOT)}")
        else:
            k(f"s_add_u32 m0, {s(sDST[i])}, {slot_const}")
        k("s_nop 0")
        k(f"buffer_load_dwordx4 {v(vDMA)}, {s(sWS,4)}, {s(sSRC[i])} offen{SC1} lds")
        k(f"s_add_u32 {s(sSRC[i])}, {s(sSRC[i])}, 1024")
        if lab: k.label(lab)
    dma_piece(0, 0); dma_piece(1, 0)
    lab = k.newlabel("p2")
    k(f"s_cmp_ge_u32 {s(sW)}, 4")
    k(f"s_cbranch_scc1 {lab}")
    dma_piece(2, 0)
    k.label(lab)
    dma_piece(0, SLOT); dma_piece(1, SLOT)
    k(f"""s_mul_i32 {s(sND)}, {s(sW)}, {HALF}
    s_add_u32 {s(sND)}, {s(sND)}, {10*GS}
    v_add_u32 {v(vT[0])}, {s(sND)}, {v(vDMA)}
    v_mov_b32 {v(V)}, 0x3f80
    v_mov_b32 {v(V+1)}, 0
    v_mov_b32 {v(V+2)}, 0x3f80
    v_mov_b32 {v(V+3)}, 0
    ds_write_b128 {v(vT[0])}, {v(V,4)}""")
    k(f"""s_mul_i32 {s(sTMP)}, {s(sKH)}, {HALF}
    v_mul_u32_u24 {v(lK1)}, {2*GS}, {v(vT[1])}
    v_add_u32 {v(lK1)}, {v(lK1)}, {v(lK2)}
    v_add_u32 {v(lK1)}, {s(sTMP)}, {v(lK1)}
    v_add_u32 {v(lK2)}, {4*GS}, {v(lK2)}
    v_add_u32 {v(lK2)}, {s(sTMP)}, {v(lK2)}
    v_lshlrev_b32 {v(vT[0])}, 2, {v(vT[1])}
    v_bfe_u32 {v(vT[3])}, {v(vLane)}, 2, 2
    v_add_u32 {v(vT[0])}, {v(vT[0])}, {v(vT[3])}
    v_lshlrev_b32 {v(lV)}, 3, {v(vT[0])}
    v_and_b32 {v(vT[0])}, 3, {v(vLane)}
    v_and_b32 {v(vT[3])}, 1, {v(vLane)}
    v_add_u32 {v(vT[3])}, 4, {v(vT[3])}
    v_bfe_u32 {v(vT[4])}, {v(vLane)}, 4, 1
    v_cmp_eq_u32 vcc, 1, {v(vT[4])}
    s_add_u32 {s(sTMP)}, {s(sTMP)}, {5*GS}
    s_nop 0
    v_cndmask_b32 {v(vT[0])}, {v(vT[0])}, {v(vT[3])}, vcc
    v_mul_u32_u24 {v(vT[0])}, {GS}, {v(vT[0])}
    v_add_u32 {v(lV)}, {v(lV)}, {v(vT[0])}
    v_add_u32 {v(lV)}, {s(sTMP)}, {v(lV)}
    v_mov_b32 {v(aK1c)}, {v(lK1)}
    v_mov_b32 {v(aK2c)}, {v(lK2)}
    v_mov_b32 {v(aVc)}, {v(lV)}
    s_mov_b32 {s(sSLOT)}, {2*SLOT}
    s_mov_b32 {s(sND)}, 0
    s_mov_b32 {s(sDO)}, {2*SLOT}
    s_mov_b32 {s(sC)}, 0""")
    sTK = 34
    k(f"""s_add_u32 {s(sTK)}, {s(sT)}, {s(sKH)}
    s_mul_i32 {s(sTK)}, {s(sTK)}, {2*20480}
    s_add_u32 {s(sTK)}, {s(sTK)}, {WS_O}
    v_and_b32 {v(vT[0])}, 15, {v(vLane)}
    v_lshlrev_b32 {v(vT[0])}, 4, {v(vT[0])}
    v_bfe_u32 {v(vT[3])}, {v(vLane)}, 4, 1
    v_mul_u32_u24 {v(vT[3])}, 20480, {v(vT[3])}
    v_add_u32 {v(vT[0])}, {v(vT[0])}, {v(vT[3])}
    s_mul_i32 {s(sTMP)}, {s(sHEAD)}, 5
    v_lshrrev_b32 {v(vT[3])}, 5, {v(vLane)}
    v_add_u32 {v(vT[3])}, {s(sTMP)}, {v(vT[3])}""")
    for i in range(3):
        k(f"""v_add_u32 {v(vT[4])}, {2*i}, {v(vT[3])}
        v_lshrrev_b32 {v(aO[i])}, 3, {v(vT[4])}
        v_lshlrev_b32 {v(aO[i])}, 10, {v(aO[i])}
        v_and_b32 {v(vT[5])}, 3, {v(vT[4])}
        v_lshl_add_u32 {v(aO[i])}, {v(vT[5])}, 8, {v(aO[i])}
        v_bfe_u32 {v(vT[5])}, {v(vT[4])}, 2, 1
        v_lshl_add_u32 {v(aO[i])}, {v(vT[5])}, 3, {v(aO[i])}
        v_add_u32 {v(aO[i])}, {v(aO[i])}, {v(vT[0])}""")
    k(f"""v_cmp_gt_u32 vcc, 32, {v(vLane)}
    v_mov_b32 {v(vT[5])}, 0x7ffffff0
    s_nop 0
    v_cndmask_b32 {v(aO[2])}, {v(vT[5])}, {v(aO[2])}, vcc""")
    for t in range(2):
        for i in range(16):
            k(f"v_mov_b32 {v(O[t]+i)}, 0")
    k(f"v_mov_b32 {v(SS[1][1]+14)}, 0")
    k(f"v_mov_b32 {v(SS[1][1]+15)}, 0")
    for i in range(4):
        k(f"v_mov_b32 {v(P[1]+4+i)}, 0")
        k(f"v_mov_b32 {v(V+4+i)}, 0")
    k("s_waitcnt vmcnt(2) lgkmcnt(0)")
    f_conv.z_signal(k)
    k(f"v_cmp_gt_u32 vcc, 32, {v(vLane)}")
    k("s_nop 1")
    for t in range(2):
        k(f"v_cndmask_b32 {v(Q2[t])}, 0, {v(Q2[t])}, vcc")
        k(f"v_cndmask_b32 {v(Q2[t]+1)}, 0, {v(Q2[t]+1)}, vcc")
    k("s_barrier")
    trace(k, opts, 17)
    def qk1(dst, t, cop="0"):
        k(f"v_mfma_f32_32x32x16_bf16 {v(dst,16)}, {v(K1,4)}, {v(Q1[t],4)}, {cop}")
    def qk2(dst, t):
        k(f"v_mfma_f32_32x32x8_bf16 {v(dst,16)}, {v(K2,2)}, {v(Q2[t],2)}, {v(dst,16)}")
    def pv(t, half):
        k(f"v_mfma_f32_32x32x16_bf16 {v(O[t],16)}, {v(V+4*half,4)}, {v(P[t]+4*half,4)}, {v(O[t],16)}")
    def rdK1(tile, par):
        k(f"ds_read_b64 {v(K1,2)}, {v(aK1c)} offset:{par*SLOT + tile*256}")
        k(f"ds_read_b64 {v(K1+2,2)}, {v(aK1c)} offset:{par*SLOT + tile*256 + GS}")
    def rdK2(tile, par):
        k(f"ds_read_b64 {v(K2,2)}, {v(aK2c)} offset:{par*SLOT + tile*256}")
    def rdV(tile, par, half):
        for q in (2*half, 2*half+1):
            k(f"ds_read_b64_tr_b16 {v(V+2*q,2)}, {v(aVc)} offset:{par*SLOT + tile*256 + q*64}")
    rdK1(0, 0); rdK2(0, 0)
    k("s_waitcnt lgkmcnt(0)")
    for t in range(2):
        qk1(SS[0][t], t); qk2(SS[0][t], t)
    rdK1(1, 0); rdK2(1, 0); rdV(0, 0, 0)
    k("s_waitcnt lgkmcnt(0)")
    k("s_nop 7")
    psw = opts.get("psw", 22)
    def loop(grp):
        name = f"L_attn_loop{grp}"
        if psw is not None and psw >= 0: k(f"s_setprio {2 if grp == 'A' else 1}")
        k(".p2align 6")
        k.label(name)
        def piece(i, sbase, off, cond):
            lab = None
            if cond:
                lab = k.newlabel("nd")
                k(f"s_cmp_eq_u32 {s(sC)}, 3")
                k(f"s_cbranch_scc1 {lab}")
            k(f"s_add_u32 {s(sTMP)}, {s(sDST[i])}, {s(sbase)}")
            if off: k(f"s_add_u32 m0, {s(sTMP)}, {off}")
            else: k(f"s_mov_b32 m0, {s(sTMP)}")
            k(f"s_add_u32 {s(sSRC[i])}, {s(sSRC[i])}, 1024")
            k(f"s_sub_u32 {s(sTMP)}, {s(sSRC[i])}, 1024")
            k(f"buffer_load_dwordx4 {v(vDMA)}, {s(sWS,4)}, {s(sTMP)} offen{SC1} lds")
            if lab: k.label(lab)
        for par in range(2):
            for i in range(4):
                cur = SS[i & 1]; nxt = SS[(i + 1) & 1]; prv = nxt
                def e(t, r): k(f"v_exp_f32 {v(cur[t]+r)}, {v(cur[t]+r)}")
                def c(t, p, buf=None):
                    b = (buf or cur)[t]
                    k(f"v_cvt_pk_bf16_f32 {v(P[t]+p)}, {v(b+2*p)}, {v(b+2*p+1)}")
                t1 = i + 1; t2 = i + 2
                def prio(step):
                    pos = ((i - 2) % 4) * 8 + step - 3
                    if pos < 0: pos += 32
                    if grp == 'A' and psw is not None and psw >= 0 and pos == psw: k("s_setprio 0")
                def par_of(t):
                    if t < 4: return t, par
                    return t - 4, (1 if par == 0 else 0)
                prio(1)
                k("s_waitcnt lgkmcnt(3)")
                qk1(nxt[0], 0)
                e(0,0); c(1, 7, prv); e(0,1); e(0,2); c(0,0); e(0,3)
                prio(2)
                pv(1, 1)
                rdV(i, par, 1)
                e(0,4); c(0,1); e(0,5); e(0,6); c(0,2); e(0,7)
                qk1(nxt[1], 1)
                if i == 2:
                    k("s_waitcnt vmcnt(0)")
                    k("s_barrier")
                    if grp == 'A' and psw is not None and psw >= 0: k("s_setprio 2")
                    if par == 1:
                        k(f"v_add_u32 {v(aK1c)}, {s(sDO)}, {v(aK1c)}")
                        k(f"v_add_u32 {v(aK2c)}, {s(sDO)}, {v(aK2c)}")
                else:
                    prio(3)
                rdK1(*par_of(t2))
                if i == 2: piece(0, sSLOT, par*SLOT, True)
                if i == 3: piece(1, sSLOT, par*SLOT, True)
                if i == 0 and grp == 'A':
                    if par == 1: piece(2, sSLOT, 0, True)
                    else: piece(2, sND, SLOT, False)
                e(0,8); c(0,3); e(0,9); e(0,10); c(0,4); e(0,11)
                prio(4)
                k("s_waitcnt lgkmcnt(4)")
                pv(0, 0)
                e(0,12); c(0,5); e(0,13); e(0,14); c(0,6); e(0,15)
                prio(5)
                qk2(nxt[0], 0)
                e(1,0); c(0,7); e(1,1); e(1,2); c(1,0); e(1,3)
                prio(6)
                k("s_waitcnt lgkmcnt(2)")
                pv(0, 1)
                e(1,4); c(1,1); e(1,5); e(1,6); c(1,2); e(1,7)
                prio(7)
                qk2(nxt[1], 1)
                rdK2(*par_of(t2))
                if par == 1 and i == 3:
                    k(f"v_add_u32 {v(aVc)}, {s(sDO)}, {v(aVc)}")
                e(1,8); c(1,3); e(1,9); e(1,10); c(1,4); e(1,11)
                prio(8)
                pv(1, 0)
                rdV(*par_of(t1), 0)
                e(1,12); c(1,5); e(1,13); e(1,14); c(1,6); e(1,15)
        k(f"""s_sub_u32 {s(sDO)}, 0, {s(sDO)}
        s_mov_b32 {s(sTMP)}, {s(sND)}
        s_mov_b32 {s(sND)}, {s(sSLOT)}
        s_mov_b32 {s(sSLOT)}, {s(sTMP)}
        s_add_u32 {s(sC)}, {s(sC)}, 1
        s_cmp_lt_u32 {s(sC)}, 4
        s_cbranch_scc1 {name}""")
    k(f"s_cmp_ge_u32 {s(sW)}, 4")
    k("s_cbranch_scc1 L_attn_grpB")
    loop('A')
    k("s_branch L_attn_loopdone")
    k.label("L_attn_grpB")
    loop('B')
    k.label("L_attn_loopdone")
    bal = psw
    last = SS[1]
    k(f"v_cvt_pk_bf16_f32 {v(P[1]+7)}, {v(last[1]+14)}, {v(last[1]+15)}")
    k("s_waitcnt lgkmcnt(0)")
    k("s_nop 1")
    pv(1, 1)
    stamp(k, opts, 5)
    trace(k, opts, 18)
    if bal is not None: k("s_setprio 0")
    vA = vT[2]; vL = vT[0]; vX = vT[1]
    RX = SS[0][0]; OO = SS[0][1]
    k(f"""s_mul_i32 {s(sTMP)}, {s(sW)}, 3072
    s_add_u32 {s(sTMP)}, {s(sTMP)}, {XCH}
    v_add_u32 {v(vA)}, {s(sTMP)}, {v(vDMA)}
    s_xor_b32 {s(sTMP)}, {s(sW)}, 4
    s_mul_i32 {s(sTMP)}, {s(sTMP)}, 3072
    s_add_u32 {s(sTMP)}, {s(sTMP)}, {XCH}
    v_add_u32 {v(vX)}, {s(sTMP)}, {v(vDMA)}
    s_nop 12
    s_cmp_ge_u32 {s(sW)}, 4
    s_cbranch_scc1 L_attn_xb""")
    for grp, snd, kp in (("A", 1, 0), ("B", 0, 1)):
        if grp == "B": k.label("L_attn_xb")
        for q in range(3):
            k(f"ds_write_b128 {v(vA)}, {v(O[snd]+4*q,4)} offset:{q*1024}")
        k("s_waitcnt vmcnt(0) lgkmcnt(0)")
        k("s_barrier")
        for q in range(3):
            k(f"ds_read_b128 {v(RX+4*q,4)}, {v(vX)} offset:{q*1024}")
        if grp == "B":
            for i in range(4): k(f"v_mov_b32 {v(Q1[0]+i)}, {v(Q1[1]+i)}")
            for i in range(2): k(f"v_mov_b32 {v(Q2[0]+i)}, {v(Q2[1]+i)}")
        k("s_waitcnt lgkmcnt(0)")
        for i in range(12):
            k(f"v_add_f32 {v(OO+i)}, {v(O[kp]+i)}, {v(RX+i)}")
        if grp == "A": k("s_branch L_attn_xc")
    k.label("L_attn_xc")
    def get_l():
        k(f"""v_mov_b32 {v(vX)}, {v(OO+8)}
        v_mov_b32 {v(vL)}, {v(OO+8)}
        s_nop 1
        v_permlane32_swap_b32 {v(vX)}, {v(vL)}""")
    get_l()
    ca, cb_, cc = vX, vT[3], vT[4]
    k(f"v_mul_f32 {v(ca)}, 0, {v(OO)}")
    k(f"v_mul_f32 {v(cb_)}, 0, {v(OO+1)}")
    k(f"v_mul_f32 {v(cc)}, 0, {v(OO+2)}")
    for i in range(3, 12):
        r = (ca, cb_, cc)[i % 3]
        k(f"v_fma_f32 {v(r)}, {v(OO+i)}, 0, {v(r)}")
    k(f"v_add_f32 {v(ca)}, {v(ca)}, {v(cb_)}")
    k(f"v_add_f32 {v(vX)}, {v(ca)}, {v(cc)}")
    k(f"""s_mov_b32 {s(sTMP)}, {f32bits(2.0**-90):#x}
    s_mov_b32 {s(sTMP2)}, {f32bits(2.0**90):#x}
    v_cmp_le_f32 {s(sMSK,2)}, {s(sTMP)}, {v(vL)}
    v_cmp_ge_f32 {s(sMSK2,2)}, {s(sTMP2)}, {v(vL)}
    v_cmp_o_f32 vcc, {v(vX)}, {v(vX)}
    s_nop 1
    s_and_b64 {s(sMSK,2)}, {s(sMSK,2)}, {s(sMSK2,2)}
    s_and_b64 {s(sMSK,2)}, {s(sMSK,2)}, vcc
    s_cmp_eq_u64 {s(sMSK,2)}, -1
    s_cbranch_scc1 L_attn_fin""")
    C = SS[1][0]; SA = SS[1][1]
    sPB = sSLOT
    k(f"""s_xor_b32 {s(sTMP)}, {s(sW)}, 4
    s_mul_i32 {s(sTMP)}, {s(sTMP)}, 3072
    s_add_u32 {s(sPB)}, {s(sTMP)}, {XCH}""")
    aP1, aP2, aPV, vS = aK1c, aK2c, aVc, aK1n
    k(f"""v_and_b32 {v(vT[3])}, 31, {v(vLane)}
    v_lshlrev_b32 {v(vT[3])}, 3, {v(vT[3])}
    v_lshrrev_b32 {v(vT[4])}, 5, {v(vLane)}
    v_lshl_add_u32 {v(aP1)}, {v(vT[4])}, 9, {v(vT[3])}
    v_add_u32 {v(aP1)}, {s(sPB)}, {v(aP1)}
    v_add_u32 {v(aP2)}, 1024, {v(vT[3])}
    v_add_u32 {v(aP2)}, {s(sPB)}, {v(aP2)}
    v_lshlrev_b32 {v(vT[4])}, 2, {v(vT[4])}
    v_bfe_u32 {v(vT[5])}, {v(vLane)}, 2, 2
    v_add_u32 {v(vT[4])}, {v(vT[4])}, {v(vT[5])}
    v_lshlrev_b32 {v(aPV)}, 3, {v(vT[4])}
    v_and_b32 {v(vT[4])}, 3, {v(vLane)}
    v_and_b32 {v(vT[5])}, 1, {v(vLane)}
    v_add_u32 {v(vT[5])}, 4, {v(vT[5])}
    v_bfe_u32 {v(vX)}, {v(vLane)}, 4, 1
    v_cmp_eq_u32 vcc, 1, {v(vX)}
    s_nop 1
    v_cndmask_b32 {v(vT[4])}, {v(vT[4])}, {v(vT[5])}, vcc
    v_lshl_add_u32 {v(aPV)}, {v(vT[4])}, 8, {v(aPV)}
    v_add_u32 {v(aPV)}, 1280, {v(aPV)}
    v_add_u32 {v(aPV)}, {s(sPB)}, {v(aPV)}
    v_lshrrev_b32 {v(vT[4])}, 4, {v(vLane)}
    v_lshlrev_b32 {v(vT[4])}, 14, {v(vT[4])}
    v_and_b32 {v(vT[5])}, 15, {v(vLane)}
    v_lshl_add_u32 {v(vS)}, {v(vT[5])}, 4, {v(vT[4])}
    v_mov_b32 {v(V)}, 0x3f80
    v_mov_b32 {v(V+1)}, 0
    v_lshlrev_b32 {v(vT[4])}, 3, {v(vLane)}
    v_add_u32 {v(vT[4])}, {s(sPB)}, {v(vT[4])}
    v_cmp_gt_u32 vcc, 32, {v(vLane)}
    s_and_saveexec_b64 {s(sMSK,2)}, vcc
    ds_write_b64 {v(vT[4])}, {v(V,2)} offset:2560
    s_mov_b64 exec, {s(sMSK,2)}""")
    def slow_load():
        k(f"s_add_u32 m0, {s(sPB)}, 0")
        k(f"s_add_u32 {s(sTMP)}, {s(sKV0)}, {s(sND)}")
        k(f"s_add_u32 {s(sTMP)}, {s(sTMP)}, {WS_K}")
        k(f"buffer_load_dwordx4 {v(vS)}, {s(sWS,4)}, {s(sTMP)} offen{SC1} lds")
        k(f"s_add_u32 m0, {s(sPB)}, 1280")
        k(f"s_add_u32 {s(sTMP2)}, {s(sTMP)}, {PART}")
        k(f"buffer_load_dwordx4 {v(vS)}, {s(sWS,4)}, {s(sTMP2)} offen{SC1} lds")
        k(f"s_mov_b64 {s(sMSK,2)}, exec")
        k(f"s_mov_b64 exec, 0xffff")
        k(f"s_add_u32 m0, {s(sPB)}, 1024")
        k(f"s_add_u32 {s(sTMP)}, {s(sTMP)}, {4*GRP}")
        k(f"buffer_load_dwordx4 {v(vS)}, {s(sWS,4)}, {s(sTMP)} offen{SC1} lds")
        k(f"s_add_u32 m0, {s(sPB)}, {1280+1024}")
        k(f"s_add_u32 {s(sTMP2)}, {s(sTMP2)}, {4*GRP}")
        k(f"buffer_load_dwordx4 {v(vS)}, {s(sWS,4)}, {s(sTMP2)} offen{SC1} lds")
        k(f"s_mov_b64 exec, {s(sMSK,2)}")
        k(f"s_add_u32 {s(sND)}, {s(sND)}, 256")
        k("s_waitcnt vmcnt(0) lgkmcnt(0)")
        k(f"ds_read_b64 {v(K1,2)}, {v(aP1)}")
        k(f"ds_read_b64 {v(K1+2,2)}, {v(aP1)} offset:256")
        k(f"ds_read_b64 {v(K2,2)}, {v(aP2)}")
    vM = vT[3]
    k(f"""v_mov_b32 {v(vM)}, 0xff800000
    s_mov_b32 {s(sND)}, 0
    s_mov_b32 {s(sC)}, 0""")
    k.label("L_attn_maxpass")
    slow_load()
    k("s_waitcnt lgkmcnt(0)")
    qk1(SA, 0); qk2(SA, 0)
    k("s_nop 15")
    for i in range(8):
        k(f"v_max3_f32 {v(vM)}, {v(SA+2*i)}, {v(SA+2*i+1)}, {v(vM)}")
    k(f"""s_add_u32 {s(sC)}, {s(sC)}, 1
    s_cmp_lt_u32 {s(sC)}, 64
    s_cbranch_scc1 L_attn_maxpass
    v_mov_b32 {v(vX)}, {v(vM)}
    s_nop 1
    v_permlane32_swap_b32 {v(vX)}, {v(vM)}
    s_nop 1
    v_max_f32 {v(vM)}, {v(vM)}, {v(vX)}
    s_mov_b32 {s(sND)}, 0
    s_mov_b32 {s(sC)}, 0""")
    for i in range(16):
        k(f"v_sub_f32 {v(C+i)}, 0, {v(vM)}")
        k(f"v_mov_b32 {v(OO+i)}, 0")
    k.label("L_attn_slow2")
    slow_load()
    for q in range(4):
        k(f"ds_read_b64_tr_b16 {v(V+2*q,2)}, {v(aPV)} offset:{q*64}")
    k("s_waitcnt lgkmcnt(0)")
    qk1(SA, 0, v(C, 16)); qk2(SA, 0)
    k("s_nop 15")
    for i in range(16):
        k(f"v_exp_f32 {v(SA+i)}, {v(SA+i)}")
    k("s_nop 0")
    for p in range(8):
        k(f"v_cvt_pk_bf16_f32 {v(P[0]+p)}, {v(SA+2*p)}, {v(SA+2*p+1)}")
    k("s_nop 1")
    k(f"v_mfma_f32_32x32x16_bf16 {v(OO,16)}, {v(V,4)}, {v(P[0],4)}, {v(OO,16)}")
    k(f"v_mfma_f32_32x32x16_bf16 {v(OO,16)}, {v(V+4,4)}, {v(P[0]+4,4)}, {v(OO,16)}")
    k(f"""s_add_u32 {s(sC)}, {s(sC)}, 1
    s_cmp_lt_u32 {s(sC)}, 64
    s_cbranch_scc1 L_attn_slow2
    s_nop 15""")
    get_l()
    k.label("L_attn_fin")
    k(f"v_rcp_f32 {v(vL)}, {v(vL)}")
    PP = P[0]
    k("s_nop 0")
    for i in range(12):
        k(f"v_mul_f32 {v(OO+i)}, {v(OO+i)}, {v(vL)}")
    for i in range(3):
        k(f"v_cvt_pk_bf16_f32 {v(PP+2*i)}, {v(OO+4*i)}, {v(OO+4*i+1)}")
        k(f"v_cvt_pk_bf16_f32 {v(PP+2*i+1)}, {v(OO+4*i+2)}, {v(OO+4*i+3)}")
    for i in range(3):
        k(f"buffer_store_dwordx2 {v(PP+2*i,2)}, {v(aO[i])}, {s(sWS,4)}, {s(sTK)} offen{SC1}")
    trace(k, opts, 19)
    lab = k.newlabel("pb"); lab2 = k.newlabel("pc")
    k(f"s_cmp_ge_u32 {s(sW)}, 4")
    k(f"s_cbranch_scc1 {lab}")
    n = post_a(k, 0)
    k(f"s_waitcnt vmcnt({n})")
    k(f"s_add_u32 {s(sTMP)}, {s(sQB)}, {CNT_O}")
    lds_last_signals(k, FLAG_OS, 8, sTMP)
    trace(k, opts, 33)
    post_a(k, 1)
    k(f"s_branch {lab2}")
    k.label(lab)
    k(f"s_waitcnt vmcnt(0)")
    k(f"s_add_u32 {s(sTMP)}, {s(sQB)}, {CNT_O}")
    lds_last_signals(k, FLAG_OS, 8, sTMP)
    trace(k, opts, 33)
    post_b(k)
    k.label(lab2)
    return R.hi, XCH + 8 * 3072
```

```python
from f_common import *
from sync import *

CONVH = 131072
CONVU = 102400
HSZ, USZ = 8960, 9472
HPAD = 64
HC0 = 0
HC1 = 4480
UC0 = 0
UC1 = UC0 + 4608 + 32
CONV_END = CONVH + 3 * HSZ
assert (HC1 - HC0) % 256 == 128 and (UC1 - UC0) % 256 == 32

sCH, sLB, sPRE, sHOOK = 56, 57, 58, 59
sLU = 63
sHS = 36
sX0, sX1, sX2 = 60, 61, 62
vPO, vPD = 175, 176

def conv_setup(k):
    k(f"""s_cmp_lt_u32 s2, 128
    s_cselect_b32 {s(sX0)}, 3, 2
    s_mul_i32 {s(sCH)}, s2, {s(sX0)}
    s_cselect_b32 {s(sX1)}, 0, 128
    s_add_u32 {s(sCH)}, {s(sCH)}, {s(sX1)}
    s_sub_u32 {s(sX1)}, {s(sW)}, 4
    s_add_u32 {s(sCH)}, {s(sCH)}, {s(sX1)}
    s_mul_i32 {s(sLB)}, {s(sX1)}, {HSZ}
    s_add_u32 {s(sLB)}, {s(sLB)}, {CONVH}
    s_mul_i32 {s(sLU)}, {s(sX1)}, {USZ}
    s_add_u32 {s(sLU)}, {s(sLU)}, {CONVU}
    s_mov_b32 {s(sPRE)}, 0
    s_cmp_lt_u32 {s(sX1)}, {s(sX0)}
    s_cselect_b32 {s(sHOOK)}, 1, 0
    s_sub_u32 {s(sX2)}, {s(sCH)}, {s(sX1)}
    v_and_b32 {v(vPO)}, 1, {v(vLane)}
    v_mul_u32_u24 {v(vPO)}, 4, {v(vPO)}
    v_add_u32 {v(vPO)}, {s(sX2)}, {v(vPO)}
    v_max_i32 {v(vPO)}, 1, {v(vPO)}
    v_subrev_u32 {v(vPO)}, 1, {v(vPO)}
    v_min_u32 {v(vPO)}, 639, {v(vPO)}
    v_mul_u32_u24 {v(vPO)}, 52429, {v(vPO)}
    v_lshrrev_b32 {v(vPO)}, 22, {v(vPO)}
    v_add_u32 {v(vPO)}, {CNT_UR}, {v(vPO)}
    v_lshlrev_b32 {v(vPO)}, 8, {v(vPO)}""")

def h_dma(k, vD):
    mk_srd(k, sHS, PHK, D * S * 2)
    k(f"s_lshl_b32 {s(sX0)}, {s(sCH)}, 12")
    for c in range(2):
        for i in range(5):
            if i == 4: k("s_mov_b64 exec, 0xff")
            k(f"s_add_u32 m0, {s(sLB)}, {(HC0, HC1)[c] + HPAD + i*1024}")
            k(f"s_add_u32 {s(sX1)}, {s(sX0)}, {i*1024 + 4*c}")
            k(f"buffer_load_dwordx4 {v(vD)}, {s(sHS,4)}, {s(sX1)} offen lds")
            if i == 4: k("s_mov_b64 exec, -1")

def u_dma(k, vD):
    k(f"s_lshl_b32 {s(sX0)}, {s(sCH)}, 12")
    k(f"s_add_u32 {s(sX0)}, {s(sX0)}, {WS_UR}")
    for c in range(2):
        for i in range(5):
            if i == 4: k("s_mov_b64 exec, 1")
            k(f"s_add_u32 m0, {s(sLU)}, {(UC0, UC1)[c] + i*1024}")
            k(f"s_add_u32 {s(sX1)}, {s(sX0)}, {i*1024 - 2*(1+c)}") if i*1024 - 2*(1+c) >= 0 else k(f"s_sub_u32 {s(sX1)}, {s(sX0)}, {2*(1+c)}")
            k(f"buffer_load_dwordx4 {v(vD)}, {s(sWS,4)}, {s(sX1)} offen{SC1} lds")
            if i == 4: k("s_mov_b64 exec, -1")

URT = 32
FX = 178
def fixups(k):
    tz, t3, t4, t5, t6 = FX + 2, FX + 6, FX + 7, FX + 8, FX + 9
    assert tz % 4 == 0
    sH0, sDV, sEX = 34, 35, 36
    k(f"""s_lshl_b32 {s(sX0)}, {s(sCH)}, 12
    s_load_dword {s(sH0)}, {s(PHK,2)}, {s(sX0)}
    s_lshr_b32 {s(sX1)}, {s(sCH)}, 1
    s_lshl_b32 {s(sX1)}, {s(sX1)}, 2
    s_load_dword {s(sDV)}, {s(PD,2)}, {s(sX1)}""")
    for i in range(4): k(f"v_mov_b32 {v(tz+i)}, 0")
    t7, t8 = FX, FX + 1
    k(f"""v_lshlrev_b32 {v(t4)}, 4, {v(vLane)}
    v_add_u32 {v(t7)}, {s(sLU)}, {v(t4)}
    v_add_u32 {v(t4)}, {s(sLB)}, {v(t4)}
    v_mov_b32 {v(t5)}, {s(sLB)}
    v_mov_b32 {v(t8)}, {s(sLU)}
    v_lshlrev_b32 {v(t6)}, 1, {v(vLane)}
    v_add_u32 {v(t6)}, {s(sLU)}, {v(t6)}
    s_mov_b64 exec, 0xf""")
    k(f"ds_write_b128 {v(t4)}, {v(tz,4)} offset:{HC0}")
    k(f"ds_write_b128 {v(t4)}, {v(tz,4)} offset:{HC1}")
    k("s_mov_b64 exec, 0x7fffffff")
    k(f"ds_write_b128 {v(t7)}, {v(tz,4)} offset:{UC0 + 4112}")
    k(f"ds_write_b128 {v(t7)}, {v(tz,4)} offset:{UC1 + 4112}")
    k("s_mov_b64 exec, 0x7f")
    k(f"ds_write_b16 {v(t6)}, {v(tz)} offset:{UC0 + 2049*2}")
    k("s_mov_b64 exec, 0x3f")
    k(f"ds_write_b16 {v(t6)}, {v(tz)} offset:{UC1 + 2050*2}")
    k("s_mov_b64 exec, 1")
    k(f"ds_write_b16 {v(t8)}, {v(tz)} offset:{UC0}")
    k(f"ds_write_b32 {v(t8)}, {v(tz)} offset:{UC1}")
    k("s_mov_b64 exec, -1")
    k("s_waitcnt lgkmcnt(0)")
    k(f"""s_and_b32 {s(sX0)}, {s(sCH)}, 1
    s_lshl_b32 {s(sX0)}, {s(sX0)}, 4
    s_lshr_b32 {s(sDV)}, {s(sDV)}, {s(sX0)}
    s_lshl_b32 {s(sDV)}, {s(sDV)}, 16
    s_lshl_b32 {s(sX0)}, {s(sH0)}, 16
    v_mov_b32 {v(t3)}, {s(sX0)}
    v_add_f32 {v(t3)}, {s(sDV)}, {v(t3)}
    s_and_b32 {s(sX0)}, {s(sH0)}, 0xffff0000
    s_nop 0
    v_cvt_pk_bf16_f32 {v(t3)}, {v(t3)}, {v(t3)}
    v_and_b32 {v(t3)}, 0xffff, {v(t3)}
    v_or_b32 {v(t3)}, {s(sX0)}, {v(t3)}
    s_mov_b64 exec, 1""")
    k(f"ds_write_b32 {v(t5)}, {v(t3)} offset:{HC0 + HPAD}")
    k(f"ds_write_b32 {v(t5)}, {v(t3)} offset:{HC1 + HPAD - 4}")
    k("s_mov_b64 exec, -1")
    k("s_waitcnt lgkmcnt(0)")

def emit_hooks(k, vD, b1_stores, ret):
    sC = 19
    k.label("L_hook")
    l1, l2, l4, l5, l6 = [k.newlabel("hk") for _ in range(5)]
    k(f"s_cmp_eq_u32 {s(sC)}, 0"); k(f"s_cbranch_scc0 {l1}")
    b1_stores(k)
    k(f"s_branch {ret}")
    k.label(l1)
    k(f"s_cmp_eq_u32 {s(sC)}, 1"); k(f"s_cbranch_scc0 {l2}")
    k(f"s_lshr_b32 {s(sX0)}, s2, 5")
    k(f"s_add_u32 {s(sX0)}, {s(sX0)}, {CNT_UR}")
    signal(k, sX0, 1, v0=vPD, v1=vPD+1)
    k(f"s_branch {ret}")
    k.label(l2)
    k(f"s_cmp_eq_u32 {s(sC)}, 2"); k(f"s_cbranch_scc0 {l4}")
    h_dma(k, vD)
    k(f"s_branch {ret}")
    k.label(l4)
    k(f"s_cmp_eq_u32 {s(sC)}, 4"); k(f"s_cbranch_scc0 {l5}")
    k(f"s_mov_b32 {s(sX0)}, {WS_CNT}")
    k(f"buffer_load_dword {v(vPD)}, {v(vPO)}, {s(sWS,4)}, {s(sX0)} offen sc1")
    k(f"s_branch {ret}")
    k.label(l5)
    k(f"s_cmp_eq_u32 {s(sC)}, 5"); k(f"s_cbranch_scc0 {l6}")
    k(f"""v_cmp_le_u32 vcc, {URT - 64 if False else 0}, {v(vPD)}""") if False else None
    k(f"""s_movk_i32 {s(sX0)}, {URT}
    v_cmp_le_u32 vcc, {s(sX0)}, {v(vPD)}
    s_nop 1
    s_cmp_eq_u64 vcc, exec
    s_cbranch_scc0 {ret}
    s_mov_b32 {s(sPRE)}, 1""")
    u_dma(k, vD)
    k(f"s_branch {ret}")
    k.label(l6)
    k(f"s_cmp_eq_u32 {s(sPRE)}, 0")
    k(f"s_cbranch_scc1 {ret}")
    k("s_waitcnt lgkmcnt(0)")
    fixups(k)
    k(f"s_branch {ret}")

def emit_conv(k, opts):
    R = Regs(4)
    sT, sT2, sRHO, sH0, sDV, sIDX, sEX = 17, 18, 20, 22, 23, 24, 26
    vT = [R.alloc() for _ in range(8)]
    lab = k.newlabel("nopoll")
    k(f"s_cmp_eq_u32 {s(sW)}, 7")
    k(f"s_cbranch_scc0 {lab}")
    wait_counters(k, vPO, URT)
    lds_flag_set(k, FLAG_UR)
    k("s_waitcnt lgkmcnt(0)")
    k.label(lab)
    k(f"s_bitcmp1_b32 {s(sHOOK)}, 0")
    k("s_cbranch_scc0 L_conv_end")
    k(f"""s_mul_i32 {s(sIDX)}, {s(sCH)}, 52429
    s_lshr_b32 {s(sIDX)}, {s(sIDX)}, 22""")
    vD = R.alloc()
    k(f"v_lshlrev_b32 {v(vD)}, 4, {v(vLane)}")
    trace(k, opts, 34)
    h_dma(k, vD)
    lds_flag_wait(k, FLAG_UR)
    u_dma(k, vD)
    k("s_waitcnt vmcnt(0)")
    fixups(k)
    trace(k, opts, 35)
    aH, aU = R.alloc(), R.alloc()
    k(f"""v_and_b32 {v(vT[0])}, 1, {v(vLane)}
    v_mul_u32_u24 {v(aH)}, {HC1 - HC0}, {v(vT[0])}
    v_bfe_u32 {v(vT[1])}, {v(vLane)}, 1, 3
    v_lshl_add_u32 {v(aH)}, {v(vT[1])}, 3, {v(aH)}
    v_lshrrev_b32 {v(vT[2])}, 4, {v(vLane)}
    v_lshl_add_u32 {v(aH)}, {v(vT[2])}, 4, {v(aH)}
    s_add_u32 {s(sT)}, {s(sLB)}, {HC0 + HPAD - 64}
    v_add_u32 {v(aH)}, {s(sT)}, {v(aH)}
    v_mul_u32_u24 {v(aU)}, {UC1 - UC0}, {v(vT[0])}
    v_lshl_add_u32 {v(aU)}, {v(vT[2])}, 4, {v(aU)}
    v_lshlrev_b32 {v(vT[1])}, 6, {v(vT[1])}
    v_sub_u32 {v(aU)}, {v(aU)}, {v(vT[1])}
    s_add_u32 {s(sT)}, {s(sLU)}, {UC0 + 2048*2 - 7*512 - 64}
    v_add_u32 {v(aU)}, {s(sT)}, {v(aU)}""")
    ACC = R.alloc(32, 4)
    HF = [R.alloc(32, 4), R.alloc(32, 4)]
    UF = [R.alloc(32, 4), R.alloc(32, 4)]
    for i in range(32):
        k(f"v_mov_b32 {v(ACC+i)}, 0")
    def rdH(f, ip):
        for r in range(2):
            k(f"ds_read_b64 {v(HF[f]+4*ip+2*r,2)}, {v(aH)} offset:{ip*512 + r*8}")
    def rdU(f, ii):
        k(f"ds_read_b128 {v(UF[f]+4*ii,4)}, {v(aU)} offset:{(7-ii)*512}")
    def mf(A, f, ip, ii):
        k(f"v_mfma_f32_16x16x32_bf16 {v(ACC+4*A,4)}, {v(HF[f]+4*ip,4)}, {v(UF[f]+4*ii,4)}, {v(ACC+4*A,4)}")
    def adv():
        k(f"v_add_u32 {v(aH)}, 64, {v(aH)}")
        k(f"v_add_u32 {v(aU)}, 64, {v(aU)}")
    trace(k, opts, 36)
    rdH(1, 0)
    for ii in range(8): rdU(1, ii)
    adv()
    k("s_waitcnt lgkmcnt(0)")
    for j in range(8):
        rdH(0, j); rdU(0, j)
        if j == 3: k("s_waitcnt lgkmcnt(0)")
    adv()
    for A in range(8): mf(A, 1, 0, A)
    k("s_waitcnt lgkmcnt(0)")
    k(f"s_mov_b32 {s(sRHO)}, 0")
    k.label("L_conv_loop")
    for f in range(2):
        rds = []
        for j in range(8):
            rds.append(("H", j, 0)); rds.append(("H", j, 1)); rds.append(("U", j, 0))
        pairs = [(A, ip) for ip in range(8) for A in range(ip, 8)]
        ri = 0
        for n, (A, ip) in enumerate(pairs):
            mf(A, f, ip, A - ip)
            if ri < len(rds) and n >= 2:
                t, j, r = rds[ri]; ri += 1
                if t == "H":
                    k(f"ds_read_b64 {v(HF[f^1]+4*j+2*r,2)}, {v(aH)} offset:{j*512 + r*8}")
                else:
                    rdU(f ^ 1, j)
        assert ri == len(rds)
        adv()
        k("s_waitcnt lgkmcnt(0)")
    k(f"""s_add_u32 {s(sRHO)}, {s(sRHO)}, 1
    s_cmp_lt_u32 {s(sRHO)}, 4
    s_cbranch_scc1 L_conv_loop""")
    trace(k, opts, 37)
    selA, selB, selX, vZ = vT[0], vT[1], vT[2], vT[3]
    k(f"""v_and_b32 {v(vT[4])}, 1, {v(vLane)}
    v_cmp_eq_u32 vcc, 1, {v(vT[4])}
    v_mov_b32 {v(vT[5])}, 0x03020100
    v_mov_b32 {v(vT[6])}, 0x07060504
    v_cndmask_b32 {v(selX)}, {v(vT[6])}, {v(vT[5])}, vcc
    v_mov_b32 {v(vT[5])}, 0x01000504
    v_mov_b32 {v(vT[6])}, 0x05040100
    v_cndmask_b32 {v(selA)}, {v(vT[5])}, {v(vT[6])}, vcc
    v_mov_b32 {v(vT[5])}, 0x03020706
    v_mov_b32 {v(vT[6])}, 0x07060302
    v_cndmask_b32 {v(selB)}, {v(vT[5])}, {v(vT[6])}, vcc
    v_bfe_u32 {v(vT[5])}, {v(vLane)}, 1, 3
    v_lshlrev_b32 {v(vZ)}, 6, {v(vT[5])}
    v_lshrrev_b32 {v(vT[5])}, 4, {v(vLane)}
    v_lshl_add_u32 {v(vZ)}, {v(vT[5])}, 4, {v(vZ)}
    v_lshl_add_u32 {v(vZ)}, {v(vT[4])}, 3, {v(vZ)}
    s_lshl_b32 {s(sT)}, {s(sCH)}, 12
    s_add_u32 {s(sT)}, {s(sT)}, {WS_Z}
    s_nop 3""")
    T0 = HF[0]
    for A in range(8):
        a, b, ra, rb, x, y = [T0 + 8*(A % 4) + i for i in range(6)]
        o = UF[0] + 2*A
        k(f"""v_cvt_pk_bf16_f32 {v(a)}, {v(ACC+4*A)}, {v(ACC+4*A+1)}
        v_cvt_pk_bf16_f32 {v(b)}, {v(ACC+4*A+2)}, {v(ACC+4*A+3)}
        s_nop 1
        v_mov_b32_dpp {v(ra)}, {v(a)} quad_perm:[1,0,3,2] row_mask:0xf bank_mask:0xf
        v_mov_b32_dpp {v(rb)}, {v(b)} quad_perm:[1,0,3,2] row_mask:0xf bank_mask:0xf
        v_perm_b32 {v(x)}, {v(a)}, {v(b)}, {v(selX)}
        v_perm_b32 {v(y)}, {v(ra)}, {v(rb)}, {v(selX)}
        v_perm_b32 {v(o)}, {v(x)}, {v(y)}, {v(selA)}
        v_perm_b32 {v(o+1)}, {v(x)}, {v(y)}, {v(selB)}""")
        k(f"buffer_store_dwordx2 {v(o,2)}, {v(vZ)}, {s(sWS,4)}, {s(sT)} offen offset:{A*512}{SC1}")
    trace(k, opts, 38)
    k.label("L_conv_end")
    return R.hi, CONV_END

def z_signal(k):
    lab = k.newlabel("zs")
    k(f"""s_cmp_lt_u32 {s(sW)}, 4
    s_cbranch_scc1 {lab}
    s_bitcmp1_b32 {s(sHOOK)}, 0
    s_cbranch_scc0 {lab}
    s_mul_i32 {s(sX0)}, {s(sCH)}, 52429
    s_lshr_b32 {s(sX0)}, {s(sX0)}, 22
    s_add_u32 {s(sX0)}, {s(sX0)}, {CNT_Z}""")
    signal(k, sX0, 1)
    k.label(lab)
```

```python
from f_common import *
from sync import *
import f_conv

XS = 16384
SLOTB = 32768
NSL = 4
KIMG = NSL * SLOTB
VIMG = KIMG + 11264
B1SCR = VIMG + 11264
P1_LDS = B1SCR + 10240
URT = 32

class Stream:
    def __init__(self): self.items = []
    def v(self, t):
        for ln in t.split("\n"):
            if ln.strip(): self.items.append(('v', ln.strip()))
    def l(self, t, tag): self.items.append(('l', t, tag))
    def w(self, tag): self.items.append(('w', tag))

def b1_front(k, vT, RB, sg):
    sK, sV, sSH, sTB, sCB, sT, sT2, sC0, sN0, sOB = sg
    mk_srd(k, sK, PBK, S * D * 2); mk_srd(k, sV, PBV, S * D * 2); mk_srd(k, sSH, PSH, D * 4 * 2)
    k(f"""s_lshl_b32 {s(sT)}, {s(sTB)}, 6
    s_sub_u32 {s(sT)}, {s(sT)}, 4
    s_mul_i32 {s(sT)}, {s(sT)}, 1280
    s_mul_i32 {s(sT2)}, {s(sCB)}, 160
    s_add_u32 {s(sOB)}, {s(sT)}, {s(sT2)}""")
    vA = RB.alloc()
    for i in range(2):
        k(f"""s_add_u32 {s(sT)}, {s(sW)}, {8*i}
        s_min_u32 {s(sT)}, {s(sT)}, 10
        s_lshl_b32 {s(sT2)}, {s(sT)}, 6
        v_add_u32 {v(vT[0])}, {s(sT2)}, {v(vLane)}""")
        div10(k, vT[0], vT[1], vT[2], vT[3])
        k(f"""v_mul_u32_u24 {v(vT[1])}, 1280, {v(vT[1])}
        v_lshl_add_u32 {v(vT[1])}, {v(vT[2])}, 4, {v(vT[1])}
        v_add_u32 {v(vA)}, {s(sOB)}, {v(vT[1])}
        s_lshl_b32 {s(sT)}, {s(sT)}, 10
        s_add_u32 m0, {s(sT)}, {KIMG}
        s_nop 0
        buffer_load_dwordx4 {v(vA)}, {s(sK,4)}, 0 offen lds
        s_add_u32 m0, {s(sT)}, {VIMG}
        s_nop 0
        buffer_load_dwordx4 {v(vA)}, {s(sV,4)}, 0 offen lds""")
    TAP = RB.alloc(4, 2)
    aT = [RB.alloc() for _ in range(2)]; aL = [RB.alloc() for _ in range(2)]
    gq, q4, ch16 = vT[4], vT[5], vT[6]
    k(f"""v_lshrrev_b32 {v(gq)}, 4, {v(vLane)}
    v_and_b32 {v(q4)}, 3, {v(vLane)}
    v_and_b32 {v(ch16)}, 15, {v(vLane)}""")
    for i in range(2):
        k(f"""s_add_u32 {s(sT)}, {s(sW)}, {8*i}
        s_min_u32 {s(sC0)}, {s(sT)}, 9
        s_lshl_b32 {s(sT2)}, {s(sC0)}, 10
        s_add_u32 {s(sT2)}, {s(sT2)}, {B1SCR}
        v_lshl_add_u32 {v(vT[0])}, {v(ch16)}, 2, {v(gq)}
        v_lshlrev_b32 {v(aL[i])}, 4, {v(vT[0])}
        v_add_u32 {v(aL[i])}, {s(sT2)}, {v(aL[i])}
        s_and_b32 {s(sN0)}, {s(sC0)}, 1
        s_lshl_b32 {s(sN0)}, {s(sN0)}, 2
        s_lshr_b32 {s(sC0)}, {s(sC0)}, 1
        s_lshl_b32 {s(sC0)}, {s(sC0)}, 4
        s_mul_i32 {s(sT)}, {s(sCB)}, 80
        s_add_u32 {s(sT)}, {s(sT)}, {s(sC0)}
        v_add_u32 {v(vT[0])}, {s(sT)}, {v(ch16)}
        v_lshlrev_b32 {v(vT[0])}, 3, {v(vT[0])}
        buffer_load_dwordx2 {v(TAP+2*i,2)}, {v(vT[0])}, {s(sSH,4)}, 0 offen
        v_add_u32 {v(vT[1])}, {s(sN0)}, {v(gq)}
        v_bfe_u32 {v(vT[0])}, {v(vLane)}, 2, 2
        v_lshl_add_u32 {v(vT[0])}, {v(vT[1])}, 3, {v(vT[0])}
        v_mul_u32_u24 {v(aT[i])}, 160, {v(vT[0])}
        v_lshl_add_u32 {v(aT[i])}, {v(q4)}, 3, {v(aT[i])}
        s_lshl_b32 {s(sC0)}, {s(sC0)}, 1
        s_add_u32 {s(sC0)}, {s(sC0)}, {KIMG}
        v_add_u32 {v(aT[i])}, {s(sC0)}, {v(aT[i])}""")
    return TAP, aT, aL

def b1_task(k, RB0, ctx, i):
    TAP, aT, aL = ctx
    RB = Regs(RB0)
    KQ = RB.alloc(6, 2); VQ = RB.alloc(4, 2)
    kk = RB.alloc(12); vv = RB.alloc(8); w = RB.alloc(4); u = RB.alloc(8)
    o = RB.alloc(4, 4)
    for qd in range(3):
        k(f"ds_read_b64_tr_b16 {v(KQ+2*qd,2)}, {v(aT[i])} offset:{qd*640}")
    for qd in range(2):
        k(f"ds_read_b64_tr_b16 {v(VQ+2*qd,2)}, {v(aT[i])} offset:{VIMG - KIMG + (qd+1)*640}")
    tp = TAP + 2*i
    k(f"""v_lshlrev_b32 {v(w)}, 16, {v(tp)}
    v_and_b32 {v(w+1)}, 0xffff0000, {v(tp)}
    v_lshlrev_b32 {v(w+2)}, 16, {v(tp+1)}
    v_and_b32 {v(w+3)}, 0xffff0000, {v(tp+1)}
    s_waitcnt lgkmcnt(2)""")
    for d in range(6):
        if d > 0: k(f"v_lshlrev_b32 {v(kk+2*d)}, 16, {v(KQ+d)}")
        k(f"v_and_b32 {v(kk+2*d+1)}, 0xffff0000, {v(KQ+d)}")
    for j in range(4, 12): k(f"v_mul_f32 {v(u+j-4)}, {v(w+3)}, {v(kk+j-3)}")
    for j in range(4, 12): k(f"v_fmac_f32 {v(u+j-4)}, {v(w+2)}, {v(kk+j-2)}")
    k("s_waitcnt lgkmcnt(0)")
    for j in range(4, 12):
        src = VQ + (j - 4) // 2
        k(f"v_and_b32 {v(vv+j-4)}, 0xffff0000, {v(src)}" if j & 1 else f"v_lshlrev_b32 {v(vv+j-4)}, 16, {v(src)}")
    for j in range(4, 12): k(f"v_fmac_f32 {v(u+j-4)}, {v(w+1)}, {v(kk+j-1)}")
    for j in range(4, 12): k(f"v_fmac_f32 {v(u+j-4)}, {v(w)}, {v(kk+j)}")
    for j in range(4, 12): k(f"v_mul_f32 {v(u+j-4)}, {v(u+j-4)}, {v(vv+j-4)}")
    U = lambda j: u + j - 4
    for d in range(4):
        k(f"v_cvt_pk_bf16_f32 {v(o+d)}, {v(U(11-2*d))}, {v(U(10-2*d))}")
    k(f"ds_write_b128 {v(aL[i])}, {v(o,4)}")
    return RB.hi

def b1_store_setup(k, vT, RB, sg):
    sTB, sCB, sT, sT2, sC0, sN0 = sg
    aS = [RB.alloc() for _ in range(3)]; aR = RB.alloc()
    q4, chq = vT[5], vT[7]
    k(f"v_lshrrev_b32 {v(chq)}, 2, {v(vLane)}")
    k(f"v_and_b32 {v(q4)}, 3, {v(vLane)}")
    for i in range(3):
        k(f"""s_add_u32 {s(sT)}, {s(sW)}, {4*i}
        s_min_u32 {s(sC0)}, {s(sT)}, 9
        s_and_b32 {s(sN0)}, {s(sC0)}, 1
        s_lshl_b32 {s(sN0)}, {s(sN0)}, 2
        s_lshr_b32 {s(sC0)}, {s(sC0)}, 1
        s_cmp_lt_u32 {s(sT)}, 10
        s_cselect_b32 {s(sT2)}, 0, 0x7ff00000
        s_lshl_b32 {s(sC0)}, {s(sC0)}, 4
        s_mul_i32 {s(sT)}, {s(sCB)}, 80
        s_add_u32 {s(sT)}, {s(sT)}, {s(sC0)}
        v_add_u32 {v(vT[0])}, {s(sT)}, {v(chq)}
        v_lshlrev_b32 {v(aS[i])}, 12, {v(vT[0])}
        v_add_u32 {v(vT[1])}, {s(sN0)}, {v(q4)}
        v_lshlrev_b32 {v(vT[1])}, 4, {v(vT[1])}
        v_sub_u32 {v(aS[i])}, {v(aS[i])}, {v(vT[1])}
        s_lshl_b32 {s(sC0)}, {s(sTB)}, 7
        s_sub_u32 {s(sC0)}, {WS_UR + 4080}, {s(sC0)}
        s_add_u32 {s(sC0)}, {s(sC0)}, {s(sT2)}
        v_add_u32 {v(aS[i])}, {s(sC0)}, {v(aS[i])}""")
    k(f"""s_lshl_b32 {s(sT)}, {s(sW)}, 10
    s_add_u32 {s(sT)}, {s(sT)}, {B1SCR}
    v_lshlrev_b32 {v(aR)}, 4, {v(vLane)}
    v_add_u32 {v(aR)}, {s(sT)}, {v(aR)}""")
    return aS, aR

class LdsQ:
    def __init__(self, k): self.k = k; self.q = []
    def op(self, text, tag): self.k(text); self.q.append(tag)
    def wait(self, tag):
        idx = [i for i, t in enumerate(self.q) if t == tag]
        if not idx: return
        n = len(self.q) - 1 - max(idx)
        assert n <= 15
        self.k(f"s_waitcnt lgkmcnt({n})")
        self.q = self.q[max(idx) + 1:]
    def wait_all(self):
        self.k("s_waitcnt lgkmcnt(0)"); self.q = []

def emit_p1(k, opts):
    UC = opts.get('uc', 3)
    R = Regs(4)
    sX, sWQ, sK, sV, sSH = 12, 16, 20, 24, 28
    sCT, sJ, sT, sT2, sC, sSC, sM0, sLW, sOB, sTB, sCB, sIDX = 32, 33, 34, 35, 36, 37, 40, 41, 42, 43, 44, 45
    if opts.get("stamp"): sM0, sLW, sOB, sTB, sCB, sIDX = 88, 89, 90, 91, 9, 62
    vT = [R.alloc() for _ in range(8)]
    k(f"""s_bfe_u32 {s(sJ)}, s2, 0x20001
    s_lshl_b32 {s(sJ)}, {s(sJ)}, 2
    s_bfe_u32 {s(sT)}, s2, 0x20003
    s_add_u32 {s(sJ)}, {s(sJ)}, {s(sT)}
    s_and_b32 {s(sCT)}, s2, 1
    s_lshl_b32 {s(sCT)}, {s(sCT)}, 3
    s_lshr_b32 {s(sT)}, s2, 5
    s_add_u32 {s(sCT)}, {s(sCT)}, {s(sT)}
    s_and_b32 {s(sTB)}, s2, 7
    s_lshl_b32 {s(sTB)}, {s(sTB)}, 2
    s_bfe_u32 {s(sT)}, s2, 0x20003
    s_add_u32 {s(sTB)}, {s(sTB)}, {s(sT)}
    s_lshr_b32 {s(sCB)}, s2, 5""")
    RF = Regs(128)
    ctx = b1_front(k, vT, RF, (sK, sV, sSH, sTB, sCB, sT, sT2, sC, sIDX, sOB))
    k(f"s_cmp_ge_u32 {s(sW)}, 4")
    k("s_cbranch_scc1 L_p1_loader")
    aX = [R.alloc(), R.alloc()]
    aW = [R.alloc(), R.alloc()]
    F = [dict(X=[R.alloc(4, 4), R.alloc(4, 4)], W=[R.alloc(4, 4), R.alloc(4, 4)]) for _ in range(3)]
    ACC = [[R.alloc(16, 4) for tt in range(2)] for nt in range(2)]
    RB = Regs(RF.hi)
    aS, aR = b1_store_setup(k, vT, RB, (sTB, sCB, sT, sT2, sC, sIDX))
    UO = RB.alloc(12, 4)
    vPF = RB.alloc(4, 4)
    NPF = 0
    if opts.get("pf"):
        NPF = 5
        mk_srd(k, sX, PX, S * D * 2); mk_srd(k, sWQ, PW, D * 3 * D * 2)
        labw = k.newlabel("pfw"); labe = k.newlabel("pfe")
        k(f"""v_lshlrev_b32 {v(vT[0])}, 4, {v(vLane)}
        s_lshr_b32 {s(sT2)}, s2, 3
        s_cmp_ge_u32 {s(sW)}, 2
        s_cbranch_scc1 {labw}
        s_and_b32 {s(sT)}, s2, 7
        s_lshl_b32 {s(sT)}, {s(sT)}, 5
        s_add_u32 {s(sT)}, {s(sT)}, {s(sT2)}
        s_mul_i32 {s(sT)}, {s(sT)}, 10240
        s_mul_i32 {s(sT2)}, {s(sW)}, 5120
        s_add_u32 {s(sT)}, {s(sT)}, {s(sT2)}""")
        for i in range(5):
            k(f"buffer_load_dwordx4 {v(vPF,4)}, {v(vT[0])}, {s(sX,4)}, {s(sT)} offen")
            k(f"s_add_u32 {s(sT)}, {s(sT)}, 1024")
        k(f"s_branch {labe}")
        k.label(labw)
        k(f"""s_bfe_u32 {s(sT)}, s2, 0x20001
        s_lshl_b32 {s(sT)}, {s(sT)}, 5
        s_add_u32 {s(sT)}, {s(sT)}, {s(sT2)}
        s_mul_i32 {s(sT)}, {s(sT)}, {5*3840}
        s_and_b32 {s(sT2)}, s2, 1
        s_lshl_b32 {s(sT2)}, {s(sT2)}, 11
        s_add_u32 {s(sT)}, {s(sT)}, {s(sT2)}
        s_and_b32 {s(sT2)}, {s(sW)}, 1
        s_lshl_b32 {s(sT2)}, {s(sT2)}, 10
        s_add_u32 {s(sT)}, {s(sT)}, {s(sT2)}""")
        for i in range(5):
            k(f"buffer_load_dwordx4 {v(vPF,4)}, {v(vT[0])}, {s(sWQ,4)}, {s(sT)} offen")
            k(f"s_add_u32 {s(sT)}, {s(sT)}, 3840")
        k.label(labe)
    k(f"""s_and_b32 {s(sT)}, {s(sW)}, 1
    s_lshl_b32 {s(sT)}, {s(sT)}, 13
    v_bfe_u32 {v(vT[0])}, {v(vLane)}, 2, 3
    v_lshlrev_b32 {v(vT[1])}, 10, {v(vT[0])}
    v_add_u32 {v(vT[1])}, {s(sT)}, {v(vT[1])}
    v_and_b32 {v(vT[0])}, 3, {v(vT[0])}
    v_and_b32 {v(vT[2])}, 3, {v(vLane)}
    v_xor_b32 {v(vT[0])}, {v(vT[0])}, {v(vT[2])}
    v_lshl_add_u32 {v(vT[1])}, {v(vT[0])}, 6, {v(vT[1])}
    v_lshrrev_b32 {v(vT[3])}, 5, {v(vLane)}
    v_xor_b32 {v(vT[3])}, {v(vT[3])}, {v(vT[2])}
    v_lshl_add_u32 {v(aX[0])}, {v(vT[3])}, 4, {v(vT[1])}
    v_xor_b32 {v(aX[1])}, 32, {v(aX[0])}""")
    k(f"""v_bfe_u32 {v(vT[0])}, {v(vLane)}, 2, 2
    v_lshrrev_b32 {v(vT[1])}, 5, {v(vLane)}
    v_lshlrev_b32 {v(vT[1])}, 3, {v(vT[1])}
    v_add_u32 {v(vT[1])}, {v(vT[1])}, {v(vT[0])}
    v_lshlrev_b32 {v(vT[1])}, 8, {v(vT[1])}
    v_add_u32 {v(vT[1])}, {XS}, {v(vT[1])}
    v_lshlrev_b32 {v(vT[0])}, 6, {v(vT[0])}
    v_bfe_u32 {v(vT[2])}, {v(vLane)}, 4, 1
    v_lshlrev_b32 {v(vT[2])}, 2, {v(vT[2])}
    v_and_b32 {v(vT[3])}, 3, {v(vLane)}
    v_add_u32 {v(vT[2])}, {v(vT[2])}, {v(vT[3])}
    s_lshr_b32 {s(sT)}, {s(sW)}, 1
    s_lshl_b32 {s(sT)}, {s(sT)}, 4
    v_add_u32 {v(vT[2])}, {s(sT)}, {v(vT[2])}""")
    for nt in range(2):
        k(f"""v_add_u32 {v(vT[3])}, {8*nt}, {v(vT[2])}
        v_lshlrev_b32 {v(vT[3])}, 3, {v(vT[3])}
        v_xor_b32 {v(vT[3])}, {v(vT[3])}, {v(vT[0])}
        v_add_u32 {v(aW[nt])}, {v(vT[3])}, {v(vT[1])}""")
    for nt in range(2):
        for tt in range(2):
            for i in range(16):
                k(f"v_mov_b32 {v(ACC[nt][tt]+i)}, 0")
    trace(k, opts, 0)
    k(f"s_waitcnt vmcnt({NPF})")
    k("s_barrier")
    trace(k, opts, 15)
    hiB = b1_task(k, RB.hi, ctx, 0)
    lab = k.newlabel("one")
    k(f"s_cmp_ge_u32 {s(sW)}, 2")
    k(f"s_cbranch_scc1 {lab}")
    b1_task(k, RB.hi, ctx, 1)
    k.label(lab)
    k("s_waitcnt lgkmcnt(0)")
    k("s_barrier")
    trace(k, opts, 1)
    stamp(k, opts, 1)
    for i in range(3):
        k(f"ds_read_b128 {v(UO+4*i,4)}, {v(aR)} offset:{min(i*4096, 4096*2)}")
    k(f"s_cmp_ge_u32 {s(sCT)}, 15")
    k("s_cbranch_scc1 L_p1_idle")
    Q = LdsQ(k)
    Q.q = [("u",)] * 3
    def rlist(f, ks, par):
        off = par * SLOTB
        L = []
        for tt in range(2):
            L.append(f"ds_read_b128 {v(F[f]['X'][tt],4)}, {v(aX[ks & 1])} offset:{off + tt*512 + (ks >> 1)*256}")
        for nt in range(2):
            for rd in range(2):
                L.append(f"ds_read_b64_tr_b16 {v(F[f]['W'][nt]+2*rd,2)}, {v(aW[nt])} offset:{off + (16*ks+4*rd)*256}")
        return [L[0], L[2], L[3], L[1], L[4], L[5]]
    ust = [f"buffer_store_dwordx4 {v(UO+4*i,4)}, {v(aS[i])}, {s(sWS,4)}, 0 offen{SC1}" for i in range(3)]
    side = []; per = 14; s0 = 99
    def take(nmax):
        n = 0
        while side and n < nmax:
            it = side[0]
            if it[0] == 'v': k(it[1])
            elif it[0] == 'l': Q.op(it[1], it[2])
            else:
                if it[1] in Q.q and len(Q.q) - 1 - max(i for i, t in enumerate(Q.q) if t == it[1]) < 4:
                    return
                Q.wait(it[1])
            side.pop(0); n += 1
    if not opts.get('ust_late'):
        Q.wait(("u",))
        for x in ust: k(x)
    for x in rlist(0, 0, 0): Q.op(x, ("g", 0))
    for x in rlist(1, 1, 0): Q.op(x, ("g", 1))
    for n in range(40):
        c, ks = n // 4, n % 4
        f = n % 3
        nn = n + 2; c2, ks2 = nn // 4, nn % 4
        if ks == 2 and c < 8:
            Q.wait_all()
            if c == UC: k("s_waitcnt vmcnt(0)")
            if c & 1:
                for a_ in aX + aW:
                    k(f"v_xor_b32 {v(a_)}, {2*SLOTB}, {v(a_)}")
            k("s_barrier")
            trace(k, opts, 2 + c)
        else:
            Q.wait(("g", n))
        rl = rlist(nn % 3, ks2, c2 & 1) if c2 <= 9 else []
        ms = [f"v_mfma_f32_32x32x16_bf16 {v(ACC[nt][tt],16)}, {v(F[f]['W'][nt],4)}, {v(F[f]['X'][tt],4)}, {v(ACC[nt][tt],16)}" for nt in range(2) for tt in range(2)]
        on = n >= s0
        k(ms[0])
        if opts.get('ust_late') and n in (1, 2, 3): k(ust[n - 1])
        for x in rl[0:3]: Q.op(x, ("g", nn))
        if on: take(per // 4)
        k(ms[1])
        for x in rl[3:6]: Q.op(x, ("g", nn))
        if on: take(per // 4)
        k(ms[2])
        if on: take(per // 4 + 1)
        k(ms[3])
        if on: take(per - 3 * (per // 4) - 1)
        if n == 29: assert not side, f"B1 stream not finished: {len(side)} left"
    stamp(k, opts, 2)
    trace(k, opts, 12)
    o16 = aX[0]
    k(f"""s_lshl_b32 {s(sOB)}, {s(sCT)}, 5
    s_lshr_b32 {s(sT)}, {s(sW)}, 1
    s_lshl_b32 {s(sT)}, {s(sT)}, 4
    s_add_u32 {s(sOB)}, {s(sOB)}, {s(sT)}
    s_lshl_b32 {s(sOB)}, {s(sOB)}, 14
    s_lshl_b32 {s(sT)}, {s(sJ)}, 10
    s_add_u32 {s(sOB)}, {s(sOB)}, {s(sT)}
    s_and_b32 {s(sT)}, {s(sW)}, 1
    s_lshl_b32 {s(sT)}, {s(sT)}, 9
    s_add_u32 {s(sOB)}, {s(sOB)}, {s(sT)}
    v_and_b32 {v(vT[0])}, 31, {v(vLane)}
    v_lshrrev_b32 {v(vT[1])}, 5, {v(vLane)}
    v_lshlrev_b32 {v(vT[1])}, 14, {v(vT[1])}
    v_lshl_add_u32 {v(o16)}, {v(vT[0])}, 4, {v(vT[1])}
    s_cmp_lt_u32 {s(sCT)}, 5
    s_cbranch_scc0 L_p1_noscale
    s_mov_b32 {s(sSC)}, {f32bits(QSCALE):#x}
    s_nop 7""")
    for nt in range(2):
        for tt in range(2):
            for i in range(16):
                k(f"v_mul_f32 {v(ACC[nt][tt]+i)}, {s(sSC)}, {v(ACC[nt][tt]+i)}")
    k.label("L_p1_noscale")
    k("s_nop 7")
    PK = F[0]['X'][0]
    for nt in range(2):
        for i in range(4):
            p = PK + (nt*4 + i) * 4
            for tt in range(2):
                A = ACC[nt][tt]
                k(f"v_cvt_pk_bf16_f32 {v(p+2*tt)}, {v(A+4*i)}, {v(A+4*i+1)}")
                k(f"v_cvt_pk_bf16_f32 {v(p+2*tt+1)}, {v(A+4*i+2)}, {v(A+4*i+3)}")
            k(f"s_add_u32 {s(sT)}, {s(sOB)}, {(8*nt+2*i)*GRP}")
            k(f"buffer_store_dwordx4 {v(p,4)}, {v(o16)}, {s(sWS,4)}, {s(sT)} offen{SC1}")
    trace(k, opts, 13)
    k("s_waitcnt vmcnt(0)")
    trace(k, opts, 14)
    signal(k, sCT, 1)
    k("s_branch L_p1_end")
    k.label("L_p1_idle")
    k("s_waitcnt lgkmcnt(0)")
    for x in ust: k(x)
    k("s_waitcnt vmcnt(0)")
    for i in range(8): k("s_barrier")
    sWO = sX
    mk_srd(k, sWO, PWO, D * D * 2)
    vP = [F[0]['X'][0] + i for i in range(5)]; aWr = F[0]['X'][0] + 5; vO8 = aWr + 1
    WFr = ACC[0][0]
    k(f"""s_bfe_u32 {s(sJ)}, s2, 0x40001
    s_lshr_b32 {s(sC)}, {s(sJ)}, 1
    s_and_b32 {s(sJ)}, {s(sJ)}, 1
    s_mul_i32 {s(sJ)}, {s(sJ)}, 10
    s_mul_i32 {s(sT2)}, {s(sC)}, 160""")
    for ph in range(5):
        k(f"v_add_u32 {v(vT[0])}, {64*ph}, {v(vLane)}")
        div10(k, vT[0], vT[1], vT[2], vT[3])
        k(f"""v_mul_u32_u24 {v(vP[ph])}, 1280, {v(vT[1])}
        v_lshl_add_u32 {v(vP[ph])}, {v(vT[2])}, 4, {v(vP[ph])}
        v_add_u32 {v(vP[ph])}, {s(sT2)}, {v(vP[ph])}""")
    k(f"""s_mul_i32 {s(sOB)}, {s(sW)}, 15360
    v_lshrrev_b32 {v(vT[0])}, 4, {v(vLane)}
    v_lshlrev_b32 {v(vT[0])}, 2, {v(vT[0])}
    v_bfe_u32 {v(vT[1])}, {v(vLane)}, 2, 2
    v_add_u32 {v(vT[0])}, {v(vT[0])}, {v(vT[1])}
    v_mul_u32_u24 {v(aWr)}, 160, {v(vT[0])}
    v_and_b32 {v(vT[1])}, 3, {v(vLane)}
    v_lshl_add_u32 {v(aWr)}, {v(vT[1])}, 3, {v(aWr)}
    v_add_u32 {v(aWr)}, {s(sOB)}, {v(aWr)}
    v_lshlrev_b32 {v(vO8)}, 4, {v(vLane)}""")
    for i in range(3):
        k(f"""s_add_u32 {s(sT)}, {s(sW)}, {4*i}
        s_min_u32 {s(sT)}, {s(sT)}, 9
        s_add_u32 {s(sT)}, {s(sT)}, {s(sJ)}
        s_mul_i32 {s(sT2)}, {s(sT)}, {32*1280}""")
        for ph in range(5):
            k(f"s_add_u32 m0, {s(sOB)}, {i*5120 + ph*1024}")
            k("s_nop 0")
            k(f"buffer_load_dwordx4 {v(vP[ph])}, {s(sWO,4)}, {s(sT2)} offen lds")
    k("s_waitcnt vmcnt(0)")
    for i in range(3):
        for nt in range(5):
            for r in range(2):
                k(f"ds_read_b64_tr_b16 {v(WFr+20*i+4*nt+2*r,2)}, {v(aWr)} offset:{i*5120 + r*2560 + nt*32}")
        k("s_waitcnt lgkmcnt(0)")
    for i in range(3):
        k(f"""s_add_u32 {s(sT)}, {s(sW)}, {4*i}
        s_min_u32 {s(sT)}, {s(sT)}, 9
        s_add_u32 {s(sT)}, {s(sT)}, {s(sJ)}
        s_mul_i32 {s(sT2)}, {s(sC)}, 20
        s_add_u32 {s(sT)}, {s(sT)}, {s(sT2)}
        s_mul_i32 {s(sT)}, {s(sT)}, 5120
        s_add_u32 {s(sT)}, {s(sT)}, {WS_WR}""")
        for nt in range(5):
            if nt == 4: k(f"s_add_u32 {s(sT)}, {s(sT)}, 4096")
            k(f"buffer_store_dwordx4 {v(WFr+20*i+4*nt,4)}, {v(vO8)}, {s(sWS,4)}, {s(sT)} offen offset:{(nt % 4)*1024}{SC1}")
    k("s_waitcnt vmcnt(0)")
    k(f"s_mov_b32 {s(sT)}, {CNT_W}")
    signal(k, sT, 1)
    k("s_branch L_p1_end")
    k.label("L_p1_loader")
    mk_srd(k, sX, PX, S * D * 2); mk_srd(k, sWQ, PW, D * 3 * D * 2)
    RL = Regs(12)
    vXo, vWo, vI, vI1 = RL.alloc(), RL.alloc(), RL.alloc(), RL.alloc()
    vA = [RL.alloc() for _ in range(3)]
    vD = RL.alloc()
    vPFL = RL.alloc(4, 4)
    k(f"s_sub_u32 {s(sLW)}, {s(sW)}, 4")
    k(f"""s_cmp_ge_u32 {s(sCT)}, 15
    s_cselect_b32 {s(sSC)}, 0x7ff00000, 0""")
    k(f"""v_bfe_u32 {v(vT[0])}, {v(vLane)}, 2, 2
    v_xor_b32 {v(vT[0])}, {s(sLW)}, {v(vT[0])}
    v_and_b32 {v(vT[1])}, 3, {v(vLane)}
    v_xor_b32 {v(vT[1])}, {v(vT[1])}, {v(vT[0])}
    v_bfe_u32 {v(vT[2])}, {v(vLane)}, 4, 1
    v_lshl_add_u32 {v(vT[1])}, {v(vT[2])}, 2, {v(vT[1])}
    v_lshrrev_b32 {v(vT[2])}, 5, {v(vLane)}
    v_lshl_add_u32 {v(vT[2])}, {v(vT[0])}, 1, {v(vT[2])}
    s_lshl_b32 {s(sT2)}, {s(sJ)}, 7
    s_lshl_b32 {s(sC)}, {s(sLW)}, 3
    s_add_u32 {s(sT2)}, {s(sT2)}, {s(sC)}
    v_add_u32 {v(vT[2])}, {s(sT2)}, {v(vT[2])}
    v_mul_u32_u24 {v(vT[2])}, 1280, {v(vT[2])}
    v_lshl_add_u32 {v(vXo)}, {v(vT[1])}, 4, {v(vT[2])}
    v_add_u32 {v(vXo)}, {s(sSC)}, {v(vXo)}""")
    k(f"""v_lshrrev_b32 {v(vT[0])}, 4, {v(vLane)}
    v_and_b32 {v(vT[1])}, 15, {v(vLane)}
    v_lshlrev_b32 {v(vT[2])}, 2, {v(vT[0])}
    v_xor_b32 {v(vT[1])}, {v(vT[1])}, {v(vT[2])}
    v_lshlrev_b32 {v(vWo)}, 4, {v(vT[1])}
    s_lshl_b32 {s(sT2)}, {s(sCT)}, 8
    v_add_u32 {v(vWo)}, {s(sT2)}, {v(vWo)}
    s_lshl_b32 {s(sT2)}, {s(sLW)}, 2
    v_add_u32 {v(vT[0])}, {s(sT2)}, {v(vT[0])}
    v_mul_u32_u24 {v(vT[0])}, 3840, {v(vT[0])}
    v_add_u32 {v(vWo)}, {v(vWo)}, {v(vT[0])}
    v_add_u32 {v(vWo)}, {s(sSC)}, {v(vWo)}
    s_lshl_b32 {s(sM0)}, {s(sLW)}, 10""")
    ops = []
    def issue(c):
        sl = (c % NSL) * SLOTB
        lab = k.newlabel("noiss")
        k(f"s_cmp_ge_u32 {s(sCT)}, 15")
        k(f"s_cbranch_scc1 {lab}")
        _issue(c, sl)
        k.label(lab)
    def _issue(c, sl):
        for i in range(4):
            k(f"s_add_u32 m0, {s(sM0)}, {sl + i*4096}")
            k(f"s_mov_b32 {s(sT)}, {c*128 + i*40960}")
            k(f"buffer_load_dwordx4 {v(vXo)}, {s(sX,4)}, {s(sT)} offen lds")
            k(f"s_add_u32 m0, {s(sM0)}, {sl + XS + i*4096}")
            k(f"s_mov_b32 {s(sT)}, {(c*64 + i*16)*3840}")
            k(f"buffer_load_dwordx4 {v(vWo)}, {s(sWQ,4)}, {s(sT)} offen lds")
            ops.extend([("c", c)] * 2)
    def wait(tag):
        idx = [i for i, o in enumerate(ops) if o == tag]
        k(f"s_waitcnt vmcnt({len(ops) - 1 - max(idx)})")
        if tag[0] != "c":
            lab = k.newlabel("spw")
            k(f"s_cmp_ge_u32 {s(sCT)}, 15")
            k(f"s_cbranch_scc0 {lab}")
            k("s_waitcnt vmcnt(0)")
            k.label(lab)
    trace(k, opts, 0)
    ops.extend([("b",)] * 6)
    issue(0); issue(1)
    trace(k, opts, 1)
    wait(("b",))
    k("s_barrier")
    hiL = b1_task(k, RF.hi, ctx, 0)
    wait(("c", 0))
    k("s_waitcnt lgkmcnt(0)")
    trace(k, opts, 3)
    k("s_barrier")
    trace(k, opts, 4)
    issue(2)
    f_conv.conv_setup(k)
    k(f"v_lshlrev_b32 {v(vD)}, 4, {v(vLane)}")
    for c in range(8):
        wait(("c", c + 1 if c < 7 else 9))
        if c == UC:
            wait(("i",))
            lab2 = k.newlabel("initok")
            k(f"v_readfirstlane_b32 {s(sT)}, {v(vI)}")
            k(f"s_cmp_lg_u32 {s(sT)}, 0")
            k(f"s_cbranch_scc1 {lab2}")
            wait_init(k)
            k.label(lab2)
        k("s_barrier")
        if c == 0: issue(3)
        if c + 4 <= 9:
            issue(c + 4)
        if c == 0:
            lab = k.newlabel("lz")
            k(f"s_cmp_eq_u32 {s(sW)}, 7")
            k(f"s_cbranch_scc0 {lab}")
            lds_flags_zero(k)
            k.label(lab)
        if c == 1 and opts.get("hpf"):
            lab = k.newlabel("hpf")
            k(f"s_bitcmp1_b32 {s(f_conv.sHOOK)}, 0")
            k(f"s_cbranch_scc0 {lab}")
            mk_srd(k, f_conv.sHS, PHK, D * S * 2)
            k(f"s_lshl_b32 {s(sT)}, {s(f_conv.sCH)}, 12")
            for i in range(4):
                k(f"buffer_load_dwordx4 {v(vPFL,4)}, {v(vD)}, {s(f_conv.sHS,4)}, {s(sT)} offen offset:{i*1024}")
            k.label(lab)
        if c == UC - 2:
            k(f"v_mov_b32 {v(vI1)}, 0")
            k(f"global_load_dword {v(vI)}, {v(vI1)}, {s(sDBG,2)} offset:128 sc1")
            ops.append(("i",))
        if c == UC:
            lab = k.newlabel("ursig")
            k(f"s_cmp_eq_u32 {s(sW)}, 7")
            k(f"s_cbranch_scc0 {lab}")
            k(f"s_add_u32 {s(sIDX)}, {s(sCB)}, {CNT_UR}")
            signal(k, sIDX, 1)
            k.label(lab)
    trace(k, opts, 50)
    h = f_conv.emit_conv(k, opts)
    trace(k, opts, 51)
    k.label("L_p1_end")
    return max(R.hi, RB.hi, RL.hi, hiB, hiL, h[0]), max(P1_LDS, h[1])
```

```python
from f_common import *
from sync import *

WIMG = 20 * 5120
ZI = 131072
TSCR = ZI + 20480
P3_LDS = TSCR + 10240

class Tail:
    def __init__(self, opts):
        self.opts = opts
        R = self.R = Regs(4)
        self.vT = [R.alloc() for _ in range(8)]
        self.OF = R.alloc(80, 4)
        self.WF = [R.alloc(20, 4) for _ in range(3)]
        self.ACC = R.alloc(20, 4)
        self.aW0, self.aW1, self.vO = R.alloc(), R.alloc(), R.alloc()
    sOUT, sQ = 16, 20
    sTB, sCB, sT, sT2, sLW, sB, sL, sN = 24, 25, 26, 27, 28, 29, 30, 31
    def ids(self, k):
        sTB, sCB, sT = self.sTB, self.sCB, self.sT
        k(f"""s_and_b32 {s(sTB)}, s2, 7
        s_lshl_b32 {s(sTB)}, {s(sTB)}, 2
        s_bfe_u32 {s(sT)}, s2, 0x20003
        s_add_u32 {s(sTB)}, {s(sTB)}, {s(sT)}
        s_lshr_b32 {s(sCB)}, s2, 5""")
    def post_a(self, k, part):
        sB, sL, sT, sCB, vO = self.sB, self.sL, self.sT, self.sCB, self.vO
        NA = self.opts.get("na", 3)
        if part == 0:
            self.ids(k)
            k(f"""v_lshlrev_b32 {v(vO)}, 4, {v(vLane)}
            s_mul_i32 {s(sB)}, {s(sCB)}, 102400
            s_add_u32 {s(sB)}, {s(sB)}, {WS_WR}
            s_lshl_b32 {s(sL)}, {s(sW)}, 10
            s_add_u32 {s(sB)}, {s(sB)}, {s(sL)}""")
        for i in (range(NA) if part == 0 else range(NA, 25)):
            k(f"s_add_u32 m0, {s(sL)}, {i*4096}")
            k(f"s_add_u32 {s(sT)}, {s(sB)}, {i*4096}")
            k(f"buffer_load_dwordx4 {v(vO)}, {s(sWS,4)}, {s(sT)} offen{SC1} lds")
        return NA
    def post_b(self, k):
        sTB, sCB, sT, sT2, sLW, sB, sL, sQ = self.sTB, self.sCB, self.sT, self.sT2, self.sLW, self.sB, self.sL, self.sQ
        vT, OF = self.vT, self.OF
        self.ids(k)
        mk_srd(k, sQ, PBQ, S * D * 2)
        k(f"s_sub_u32 {s(sLW)}, {s(sW)}, 4")
        k(f"""s_mul_i32 {s(sL)}, {s(sLW)}, 5120
        s_add_u32 {s(sL)}, {s(sL)}, {ZI}
        s_lshl_b32 {s(sT)}, {s(sTB)}, 6
        s_lshl_b32 {s(sT2)}, {s(sLW)}, 4
        s_add_u32 {s(sB)}, {s(sT)}, {s(sT2)}""")
        vq = [OF, OF + 1, OF + 2]
        for i in range(3):
            k(f"v_add_u32 {v(vT[0])}, {64*i}, {v(vLane)}")
            div10(k, vT[0], vT[1], vT[2], vT[3])
            k(f"""v_add_u32 {v(vT[1])}, {s(sB)}, {v(vT[1])}
            v_mul_u32_u24 {v(vq[i])}, 1280, {v(vT[1])}
            v_lshl_add_u32 {v(vq[i])}, {v(vT[2])}, 4, {v(vq[i])}""")
        k(f"s_mul_i32 {s(sT)}, {s(sCB)}, 160")
        for i in range(3):
            if i == 2: k("s_mov_b64 exec, 0xffffffff")
            k(f"s_add_u32 m0, {s(sL)}, {2560 + i*1024}")
            k("s_nop 0")
            k(f"buffer_load_dwordx4 {v(vq[i])}, {s(sQ,4)}, {s(sT)} offen lds")
        k("s_mov_b64 exec, -1")
        return 3

def emit_p3(k, opts, T):
    R, vT, OF, WF, ACC, aW0, aW1, vO = T.R, T.vT, T.OF, T.WF, T.ACC, T.aW0, T.aW1, T.vO
    sOUT, sQ = T.sOUT, T.sQ
    sTB, sCB, sT, sT2, sLW, sB, sL, sN = T.sTB, T.sCB, T.sT, T.sT2, T.sLW, T.sB, T.sL, T.sN
    mk_srd(k, sOUT, POUT, S * 2 * D * 2)
    k(f"s_cmp_ge_u32 {s(sW)}, 4")
    k("s_cbranch_scc1 L_p3_aux")
    k(f"""v_mov_b32 {v(aW0)}, {v(vO)}
    v_add_u32 {v(aW1)}, {50*1024}, {v(vO)}""")
    for i in range(20):
        k(f"v_mov_b32 {v(ACC+i)}, 0")
    vS = [R.alloc() for _ in range(3)]; aTW, aTR = R.alloc(), R.alloc()
    k(f"""s_lshl_b32 {s(sT)}, {s(sTB)}, 6
    s_lshl_b32 {s(sT2)}, {s(sW)}, 4
    s_add_u32 {s(sN)}, {s(sT)}, {s(sT2)}""")
    for i in range(3):
        k(f"v_add_u32 {v(vT[0])}, {64*i}, {v(vLane)}")
        div10(k, vT[0], vT[1], vT[2], vT[3])
        k(f"""v_add_u32 {v(vT[1])}, {s(sN)}, {v(vT[1])}
        v_mul_u32_u24 {v(vS[i])}, 2560, {v(vT[1])}
        v_lshl_add_u32 {v(vS[i])}, {v(vT[2])}, 4, {v(vS[i])}""")
    k(f"""s_mul_i32 {s(sT)}, {s(sW)}, 2560
    s_add_u32 {s(sT)}, {s(sT)}, {TSCR}
    v_and_b32 {v(vT[0])}, 15, {v(vLane)}
    v_mul_u32_u24 {v(aTW)}, 160, {v(vT[0])}
    v_lshrrev_b32 {v(vT[0])}, 4, {v(vLane)}
    v_lshl_add_u32 {v(aTW)}, {v(vT[0])}, 3, {v(aTW)}
    v_add_u32 {v(aTW)}, {s(sT)}, {v(aTW)}
    v_add_u32 {v(aTR)}, {s(sT)}, {v(vO)}""")
    k(f"""s_lshr_b32 {s(sT)}, {s(sTB)}, 2
    s_add_u32 {s(sT)}, {s(sT)}, {CNT_O}
    s_lshl_b32 {s(sT)}, {s(sT)}, 8
    v_mov_b32 {v(vT[0])}, {s(sT)}
    s_waitcnt vmcnt(0)""")
    lds_count_sync(k, FLAG_W, 4)
    trace(k, opts, 29)
    lab = k.newlabel("po"); lab2 = k.newlabel("po2")
    k(f"s_cmp_eq_u32 {s(sW)}, 0")
    k(f"s_cbranch_scc0 {lab}")
    wait_counters(k, vT[0], 32)
    lds_flag_set(k, FLAG_O)
    k(f"s_branch {lab2}")
    k.label(lab)
    lds_flag_wait(k, FLAG_O)
    k.label(lab2)
    stamp(k, opts, 6)
    trace(k, opts, 30)
    k(f"""s_lshl_b32 {s(sT)}, {s(sTB)}, 2
    s_add_u32 {s(sT)}, {s(sT)}, {s(sW)}
    s_mul_i32 {s(sT)}, {s(sT)}, 20480
    s_add_u32 {s(sT)}, {s(sT)}, {WS_O}""")
    for ks in range(20):
        if ks % 4 == 0 and ks > 0:
            k(f"s_add_u32 {s(sT)}, {s(sT)}, 4096")
        k(f"buffer_load_dwordx4 {v(OF+4*ks,4)}, {v(vO)}, {s(sWS,4)}, {s(sT)} offen offset:{(ks%4)*1024}{SC1}")
    def rl(ks):
        a = aW0 if ks < 10 else aW1
        return [f"ds_read_b128 {v(WF[ks % 3]+4*nt,4)}, {v(a)} offset:{((ks % 10)*5 + nt)*1024}" for nt in range(5)]
    k("s_waitcnt lgkmcnt(0)")
    for x in rl(0) + rl(1): k(x)
    for ks in range(20):
        k(f"s_waitcnt lgkmcnt({5 if ks < 19 else 0})" + (f" vmcnt({19 - ks})"))
        nx = rl(ks + 2) if ks + 2 < 20 else []
        for nt in range(5):
            k(f"v_mfma_f32_16x16x32_bf16 {v(ACC+4*nt,4)}, {v(WF[ks % 3]+4*nt,4)}, {v(OF+4*ks,4)}, {v(ACC+4*nt,4)}")
            if nx: k(nx[nt])
    trace(k, opts, 31)
    k(f"s_mul_i32 {s(sT)}, {s(sCB)}, 160")
    k("s_nop 7")
    P = WF[0]
    for nt in range(5):
        k(f"v_cvt_pk_bf16_f32 {v(P+2*nt)}, {v(ACC+4*nt)}, {v(ACC+4*nt+1)}")
        k(f"v_cvt_pk_bf16_f32 {v(P+2*nt+1)}, {v(ACC+4*nt+2)}, {v(ACC+4*nt+3)}")
        k(f"ds_write_b64 {v(aTW)}, {v(P+2*nt,2)} offset:{nt*32}")
    O2 = WF[1]
    for i in range(3):
        k(f"ds_read_b128 {v(O2+4*i,4)}, {v(aTR)} offset:{i*1024}")
    for i in range(3):
        k(f"s_waitcnt lgkmcnt({2-i})")
        if i == 2: k("s_mov_b64 exec, 0xffffffff")
        k(f"buffer_store_dwordx4 {v(O2+4*i,4)}, {v(vS[i])}, {s(sOUT,4)}, {s(sT)} offen")
    k("s_mov_b64 exec, -1")
    k("s_branch L_p3_end")
    k.label("L_p3_aux")
    k(f"""s_add_u32 {s(sT)}, {s(sCB)}, {CNT_Z}
    s_lshl_b32 {s(sT)}, {s(sT)}, 8
    v_mov_b32 {v(vT[0])}, {s(sT)}
    v_lshrrev_b32 {v(vT[6])}, 1, {v(vLane)}
    v_lshlrev_b32 {v(vT[6])}, 12, {v(vT[6])}
    v_and_b32 {v(vT[1])}, 1, {v(vLane)}
    v_lshl_add_u32 {v(vT[6])}, {v(vT[1])}, 4, {v(vT[6])}""")
    lab = k.newlabel("pz"); lab2 = k.newlabel("pz2")
    k(f"s_cmp_eq_u32 {s(sW)}, 7")
    k(f"s_cbranch_scc0 {lab}")
    wait_counters(k, vT[0], 80)
    lds_flag_set(k, FLAG_Z)
    k(f"s_branch {lab2}")
    k.label(lab)
    lds_flag_wait(k, FLAG_Z)
    k.label(lab2)
    trace(k, opts, 32)
    k(f"""s_mul_i32 {s(sT)}, {s(sCB)}, {80*4096}
    s_lshl_b32 {s(sT2)}, {s(sB)}, 1
    s_add_u32 {s(sT)}, {s(sT)}, {s(sT2)}
    s_add_u32 {s(sT)}, {s(sT)}, {WS_Z}""")
    for i in range(3):
        if i == 2: k("s_mov_b64 exec, 0xffffffff")
        k(f"s_add_u32 m0, {s(sL)}, {i*1024}")
        k(f"s_add_u32 {s(sT2)}, {s(sT)}, {i*32*4096}")
        k(f"buffer_load_dwordx4 {v(vT[6])}, {s(sWS,4)}, {s(sT2)} offen{SC1} lds")
    k("s_mov_b64 exec, -1")
    base = (OF + 8 + 3) // 4 * 4
    Z = [base, base + 4, base + 8]; Q = [base + 12, base + 16, base + 20]
    zf, qf, o = base + 24, base + 32, base + 40
    aZ, aQ, aO, oc = base + 44, base + 45, base + 46, base + 47
    k(f"""v_lshrrev_b32 {v(oc)}, 4, {v(vLane)}
    v_lshlrev_b32 {v(vT[1])}, 3, {v(oc)}
    v_bfe_u32 {v(vT[2])}, {v(vLane)}, 2, 2
    v_add_u32 {v(vT[1])}, {v(vT[1])}, {v(vT[2])}
    v_lshlrev_b32 {v(aZ)}, 5, {v(vT[1])}
    v_and_b32 {v(vT[2])}, 3, {v(vLane)}
    v_lshl_add_u32 {v(aZ)}, {v(vT[2])}, 3, {v(aZ)}
    v_add_u32 {v(aZ)}, {s(sL)}, {v(aZ)}
    v_and_b32 {v(vT[1])}, 15, {v(vLane)}
    v_mul_u32_u24 {v(aQ)}, 160, {v(vT[1])}
    v_lshl_add_u32 {v(aQ)}, {v(oc)}, 4, {v(aQ)}
    v_add_u32 {v(aQ)}, {s(sL)}, {v(aQ)}
    v_add_u32 {v(vT[1])}, {s(sB)}, {v(vT[1])}
    v_mul_u32_u24 {v(aO)}, 2560, {v(vT[1])}
    v_lshl_add_u32 {v(aO)}, {v(oc)}, 4, {v(aO)}
    s_mul_i32 {s(sT)}, {s(sCB)}, 160
    s_add_u32 {s(sT)}, {s(sT)}, 1280
    s_waitcnt vmcnt(0)""")
    for i in range(3):
        k(f"ds_read_b64_tr_b16 {v(Z[i],2)}, {v(aZ)} offset:{i*1024}")
        k(f"ds_read_b64_tr_b16 {v(Z[i]+2,2)}, {v(aZ)} offset:{i*1024 + 128}")
        k(f"ds_read_b128 {v(Q[i],4)}, {v(aQ)} offset:{2560 + i*64}")
    for i in range(3):
        k(f"s_waitcnt lgkmcnt({3*(2-i)})")
        for d in range(4):
            k(f"v_lshlrev_b32 {v(zf+2*d)}, 16, {v(Z[i]+d)}")
            k(f"v_and_b32 {v(zf+2*d+1)}, 0xffff0000, {v(Z[i]+d)}")
            k(f"v_lshlrev_b32 {v(qf+2*d)}, 16, {v(Q[i]+d)}")
            k(f"v_and_b32 {v(qf+2*d+1)}, 0xffff0000, {v(Q[i]+d)}")
        for e in range(8):
            k(f"v_mul_f32 {v(zf+e)}, {v(zf+e)}, {v(qf+e)}")
        for d in range(4):
            k(f"v_cvt_pk_bf16_f32 {v(Z[i]+d)}, {v(zf+2*d)}, {v(zf+2*d+1)}")
        if i == 2: k("s_mov_b64 exec, 0xffffffff")
        k(f"buffer_store_dwordx4 {v(Z[i],4)}, {v(aO)}, {s(sOUT,4)}, {s(sT)} offen offset:{i*64}")
    k("s_mov_b64 exec, -1")
    trace(k, opts, 39)
    k.label("L_p3_end")
    return R.hi, P3_LDS
```

```python
from asm import *
from layout import *

sWS = 4
sW = 8
sDBG = 84
sSY0, sSY1 = 92, 93
sSYM = 94
vLane = 1
vSY0, vSY1 = 2, 3

WS_CNT = 0x3000000
CNT_STRIDE = 256
CNT_QKV = 0
CNT_W = 15
CNT_UR = 16
CNT_Z = 24
CNT_O = 32
NCNT = 40
def cnt_off(i): return WS_CNT + i * CNT_STRIDE
SPIN_MAX = 1 << 22

def init_counters(k):
    lab = k.newlabel("noinit")
    k(f"""s_xor_b32 {s(sSY0)}, s2, 225
    s_or_b32 {s(sSY0)}, {s(sSY0)}, {s(sW)}
    s_cmp_lg_u32 {s(sSY0)}, 0
    s_cbranch_scc1 {lab}
    v_lshlrev_b32 {v(vSY0)}, 8, {v(vLane)}
    v_mov_b32 {v(vSY1)}, 0
    s_mov_b32 {s(sSY0)}, {WS_CNT}
    buffer_store_dword {v(vSY1)}, {v(vSY0)}, {s(sWS,4)}, {s(sSY0)} offen sc1
    s_waitcnt vmcnt(0)
    v_mov_b32 {v(vSY0)}, 0
    v_mov_b32 {v(vSY1)}, 1
    global_store_dword {v(vSY0)}, {v(vSY1)}, {s(sDBG,2)} offset:128 sc1
    s_waitcnt vmcnt(0)""")
    k.label(lab)

def wait_init(k):
    l0 = k.newlabel("winit"); l1 = k.newlabel("winitd")
    k(f"s_mov_b32 {s(sSY0)}, 0")
    k(f"v_mov_b32 {v(vSY0)}, 0")
    k.label(l0)
    k(f"""global_load_dword {v(vSY1)}, {v(vSY0)}, {s(sDBG,2)} offset:128 sc1
    s_waitcnt vmcnt(0)
    v_readfirstlane_b32 {s(sSY1)}, {v(vSY1)}
    s_add_u32 {s(sSY0)}, {s(sSY0)}, 1
    s_cmp_lg_u32 {s(sSY1)}, 0
    s_cbranch_scc1 {l1}
    s_sleep 2
    s_cmp_lt_u32 {s(sSY0)}, {SPIN_MAX}
    s_cbranch_scc1 {l0}""")
    k.label(l1)

def signal(k, s_idx, amount, v0=None, v1=None):
    vSY0 = v0 if v0 is not None else globals()["vSY0"]
    vSY1 = v1 if v1 is not None else globals()["vSY1"]
    k(f"""s_lshl_b32 {s(sSY0)}, {s(s_idx)}, 8
    s_add_u32 {s(sSY0)}, {s(sSY0)}, {WS_CNT}
    v_mov_b32 {v(vSY0)}, 0
    v_mov_b32 {v(vSY1)}, {amount}
    s_mov_b64 {s(sSYM,2)}, exec
    s_mov_b64 exec, 1
    buffer_atomic_add {v(vSY1)}, {v(vSY0)}, {s(sWS,4)}, {s(sSY0)} offen
    s_mov_b64 exec, {s(sSYM,2)}""")

def wait_counters(k, voff, target):
    l0 = k.newlabel("wcnt"); l1 = k.newlabel("wcntd")
    k(f"s_mov_b32 {s(sSY0)}, 0")
    k(f"s_mov_b32 {s(sSY1)}, {WS_CNT}")
    k.label(l0)
    k(f"""buffer_load_dword {v(vSY1)}, {v(voff)}, {s(sWS,4)}, {s(sSY1)} offen sc1
    s_add_u32 {s(sSY0)}, {s(sSY0)}, 1
    s_waitcnt vmcnt(0)
    v_cmp_le_u32 vcc, {target}, {v(vSY1)}
    s_nop 1
    s_cmp_eq_u64 vcc, exec
    s_cbranch_scc1 {l1}
    s_sleep 3
    s_cmp_lt_u32 {s(sSY0)}, {SPIN_MAX}
    s_cbranch_scc1 {l0}""")
    k.label(l1)

LFLAG = 163776
FLAG_UR, FLAG_O, FLAG_Z, FLAG_W, FLAG_OS = 0, 1, 2, 3, 4
def lds_flags_zero(k):
    k(f"""v_mov_b32 {v(vSY0)}, {LFLAG}
    v_mov_b32 {v(vSY1)}, 0
    ds_write_b32 {v(vSY0)}, {v(vSY1)}
    ds_write_b32 {v(vSY0)}, {v(vSY1)} offset:4
    ds_write_b32 {v(vSY0)}, {v(vSY1)} offset:8
    ds_write_b32 {v(vSY0)}, {v(vSY1)} offset:12
    ds_write_b32 {v(vSY0)}, {v(vSY1)} offset:16
    s_waitcnt lgkmcnt(0)""")
def lds_flag_set(k, f):
    k(f"""v_mov_b32 {v(vSY0)}, {LFLAG}
    v_mov_b32 {v(vSY1)}, 1
    ds_write_b32 {v(vSY0)}, {v(vSY1)} offset:{4*f}""")
def lds_flag_wait(k, f):
    l0 = k.newlabel("lw"); l1 = k.newlabel("lwd")
    k(f"v_mov_b32 {v(vSY0)}, {LFLAG}")
    k(f"s_mov_b32 {s(sSY0)}, 0")
    k.label(l0)
    k(f"""ds_read_b32 {v(vSY1)}, {v(vSY0)} offset:{4*f}
    s_add_u32 {s(sSY0)}, {s(sSY0)}, 1
    s_waitcnt lgkmcnt(0)
    v_readfirstlane_b32 {s(sSY1)}, {v(vSY1)}
    s_cmp_lg_u32 {s(sSY1)}, 0
    s_cbranch_scc1 {l1}
    s_sleep 1
    s_cmp_lt_u32 {s(sSY0)}, {SPIN_MAX * 16}
    s_cbranch_scc1 {l0}""")
    k.label(l1)

def lds_count_sync(k, f, n):
    l0 = k.newlabel("lc"); l1 = k.newlabel("lcd")
    k(f"""v_mov_b32 {v(vSY0)}, {LFLAG}
    v_mov_b32 {v(vSY1)}, 1
    s_mov_b64 {s(sSYM,2)}, exec
    s_mov_b64 exec, 1
    ds_add_u32 {v(vSY0)}, {v(vSY1)} offset:{4*f}
    s_mov_b64 exec, {s(sSYM,2)}
    s_mov_b32 {s(sSY0)}, 0""")
    k.label(l0)
    k(f"""ds_read_b32 {v(vSY1)}, {v(vSY0)} offset:{4*f}
    s_add_u32 {s(sSY0)}, {s(sSY0)}, 1
    s_waitcnt lgkmcnt(0)
    v_readfirstlane_b32 {s(sSY1)}, {v(vSY1)}
    s_cmp_ge_u32 {s(sSY1)}, {n}
    s_cbranch_scc1 {l1}
    s_cmp_lt_u32 {s(sSY0)}, {SPIN_MAX * 16}
    s_cbranch_scc1 {l0}""")
    k.label(l1)

def lds_last_signals(k, f, n, s_idx):
    lab = k.newlabel("nl")
    k(f"""v_mov_b32 {v(vSY0)}, {LFLAG}
    v_mov_b32 {v(vSY1)}, 1
    s_mov_b64 {s(sSYM,2)}, exec
    s_mov_b64 exec, 1
    ds_add_rtn_u32 {v(vSY1)}, {v(vSY0)}, {v(vSY1)} offset:{4*f}
    s_waitcnt lgkmcnt(0)
    v_readfirstlane_b32 {s(sSY1)}, {v(vSY1)}
    s_mov_b64 exec, {s(sSYM,2)}
    s_cmp_eq_u32 {s(sSY1)}, {n - 1}
    s_cbranch_scc0 {lab}""")
    signal(k, s_idx, 1)
    k.label(lab)
```
